```python
import torch

def _softmax(x, axis=-1):
    return torch.softmax(x, dim=axis)
def _gelu(x):
    return torch.nn.functional.gelu(x, approximate="tanh")
def _silu(x):
    return torch.nn.functional.silu(x)
def _sigmoid(x):
    return torch.sigmoid(x)
def _layernorm(x, axis=-1, eps=1e-5):
    m = x.mean(dim=axis, keepdim=True)
    v = x.var(dim=axis, keepdim=True, unbiased=False)
    return (x - m) / torch.sqrt(v + eps)
def _scatter_add(tgt, idx, src, axis=0):
    return tgt.clone().index_add_(axis, idx, src)
def _segment_sum(src, seg, n):
    out = torch.zeros((n,) + src.shape[1:], dtype=src.dtype)
    return out.index_add_(0, seg, src)
def _pad(x, pw):
    flat = tuple(v for pair in reversed(pw) for v in pair)
    return torch.nn.functional.pad(x, flat)

kernel_name = 'sequential_preLN__ssm_conv_s4d__dense_activation_gelu__prompt'

def setup_inputs():

    _w = (lambda a: (lambda t: t.to(torch.bfloat16) if t.is_floating_point() else t)(torch.as_tensor(a)))
    def _A_setup():
        Bsz, L, D, N = 1, 2048, 448, 256
        return {
            "u": _w((lambda *s: torch.randn(*s, dtype=torch.bfloat16) * 0.05)(Bsz, L, D)),
            "log_A_real": _w((lambda *s: torch.randn(*s, dtype=torch.bfloat16) * 6.4)(D, N) * 0.5),
            "A_imag": _w((lambda *s: torch.randn(*s, dtype=torch.bfloat16) * 0.05)(D, N) * 3.14),
            "C_real": _w((lambda *s: torch.randn(*s, dtype=torch.bfloat16) * 0.05)(D, N) / N ** 0.5),
            "C_imag": _w((lambda *s: torch.randn(*s, dtype=torch.bfloat16) * 0.05)(D, N) / N ** 0.5),
            "log_dt": _w((lambda *s: torch.randn(*s, dtype=torch.bfloat16) * 0.05)(D) * 0.5 - 4.0),
            "D_skip": _w((lambda *s: torch.randn(*s, dtype=torch.bfloat16) * 0.05)(D)),
        }
    _A_in = _A_setup()

    def _B_setup():
        B, S, D, F = 1, 2048, 448, 1792
        return {
            "x": _w((lambda *s: torch.randn(*s, dtype=torch.bfloat16) * 0.05)(B, S, D)),
            "w1": _w((lambda *s: torch.randn(*s, dtype=torch.bfloat16) * 0.8)(D, F) * (D ** -0.5)),
            "b1": _w((lambda *s: torch.randn(*s, dtype=torch.bfloat16) * 0.2)(F) * 0.01),
            "w2": _w((lambda *s: torch.randn(*s, dtype=torch.bfloat16) * 0.2)(F, D) * (F ** -0.5)),
            "b2": _w((lambda *s: torch.randn(*s, dtype=torch.bfloat16) * 0.2)(D) * 0.01),
        }
    _B_in = _B_setup()

    return {
        "A_u": _A_in["u"],
        "A_log_A_real": _A_in["log_A_real"],
        "A_A_imag": _A_in["A_imag"],
        "A_C_real": _A_in["C_real"],
        "A_C_imag": _A_in["C_imag"],
        "A_log_dt": _A_in["log_dt"],
        "A_D_skip": _A_in["D_skip"],
        "B_x": _B_in["x"],
        "B_w1": _B_in["w1"],
        "B_b1": _B_in["b1"],
        "B_w2": _B_in["w2"],
        "B_b2": _B_in["b2"],
    }

def reference(A_u, A_log_A_real, A_A_imag, A_C_real, A_C_imag, A_log_dt, A_D_skip, B_x, B_w1, B_b1, B_w2, B_b2):
    def _A_ref(u, log_A_real, A_imag, C_real, C_imag, log_dt, D_skip):
        L = u.shape[1]
        dt = torch.exp(log_dt)
        A = -torch.exp(log_A_real) + 1j * A_imag
        C = (C_real + 1j * C_imag) * dt[:, None]
        pos = (lambda x, dt: x.to(dt))(torch.arange(L), log_dt.dtype)
        P = torch.exp((A * dt[:, None])[:, :, None] * pos[None, None, :])
        K = 2.0 * torch.einsum("dn,dnl->dl", C, P).real
        L2 = 2 * L
        u_t = (lambda x, *d: x.permute(*d))(u, 0, 2, 1)
        Kf = (lambda x, *a, **k: torch.fft.rfft(x.float(), *a, **k))(K, L2)
        Uf = (lambda x, *a, **k: torch.fft.rfft(x.float(), *a, **k))(u_t, L2)
        y = (lambda x, *a, **k: torch.fft.irfft(x, *a, **k).to(torch.bfloat16))(Uf * Kf[None, :, :], L2)[:, :, :L]
        y = (lambda x, *d: x.permute(*d))(y, 0, 2, 1)
        return y + u * D_skip[None, None, :]

    def _B_ref(x, w1, b1, w2, b2):
        h = torch.einsum("bsd,df->bsf", x, w1) + b1
        h = _gelu(h)
        return torch.einsum("bsf,fd->bsd", h, w2) + b2

    x = A_u
    h = x + _A_ref(_layernorm(x, axis=-1), A_log_A_real, A_A_imag, A_C_real, A_C_imag, A_log_dt, A_D_skip)
    h2 = h + _B_ref(_layernorm(h, axis=-1), B_w1, B_b1, B_w2, B_b2)
    return h2
```

```python
import re

TRANS = ("v_exp_f32", "v_log_f32", "v_rcp_f32", "v_rsq_f32", "v_sqrt_f32", "v_sin_f32", "v_cos_f32",
         "v_rcp_iflag_f32")


def _regs(tok):
    tok = tok.strip()
    tok = tok.lstrip("-")
    m = re.match(r"^abs\((.*)\)$", tok)
    if m:
        tok = m.group(1)
    m = re.match(r"^\|(.*)\|$", tok)
    if m:
        tok = m.group(1)
    m = re.match(r"^([vsa])(\d+)$", tok)
    if m:
        return [(m.group(1), int(m.group(2)))]
    m = re.match(r"^([vsa])\[(\d+):(\d+)\]$", tok)
    if m:
        return [(m.group(1), i) for i in range(int(m.group(2)), int(m.group(3)) + 1)]
    if tok == "vcc":
        return [("s", 106), ("s", 107)]
    if tok == "vcc_lo":
        return [("s", 106)]
    if tok == "vcc_hi":
        return [("s", 107)]
    if tok == "exec":
        return [("s", 126), ("s", 127)]
    if tok == "m0":
        return [("s", 124)]
    return []


class Ins:
    def __init__(self, text):
        self.text = text
        t = text.split(";")[0].strip()
        self.is_label = t.endswith(":")
        self.op = ""
        self.rd, self.wr = set(), set()
        self.dpp = False
        self.kind = "other"
        if self.is_label or not t or t.startswith("."):
            self.kind = "label" if self.is_label else "none"
            return
        parts = t.split(None, 1)
        op = parts[0]
        self.op = op
        rest = parts[1] if len(parts) > 1 else ""
        ops = [o.strip() for o in rest.split(",")] if rest else []
        mods = ""
        if ops:
            last = ops[-1].split(None, 1)
            if len(last) > 1:
                ops[-1] = last[0]
                mods = last[1]
        self.ops = ops
        self.mods = mods
        self.dpp = ("row_" in mods or "quad_perm" in mods or "wave_" in mods or "_dpp" in op)
        R = [_regs(o) for o in ops]
        base = op.replace("_e32", "").replace("_e64", "").replace("_dpp", "")
        self.base = base
        flat = lambda L: set(x for l in L for x in l)
        if op.startswith("v_mfma"):
            self.kind = "mfma"
            self.wr = flat(R[:1])
            self.rd = flat(R[1:])
            self.srcC = flat(R[3:4])
            self.srcAB = flat(R[1:3])
            self.passes = 8 if "32x32" in op else 4
        elif op.startswith("v_cmp"):
            self.kind = "valu"
            self.wr = flat(R[:1])
            self.rd = flat(R[1:])
        elif op.startswith("v_permlane") and "swap" in op:
            self.kind = "valu"
            self.wr = flat(R[:2])
            self.rd = flat(R[:2])
            self.permlane = True
        elif op.startswith("v_"):
            self.kind = "valu"
            self.wr = flat(R[:1])
            self.rd = flat(R[1:])
            if base in ("v_fmac_f32", "v_dot2c_f32_bf16", "v_writelane_b32"):
                self.rd |= self.wr
            if base in ("v_add_co_u32", "v_addc_co_u32", "v_sub_co_u32", "v_div_scale_f32"):
                self.wr |= flat(R[1:2])
                self.rd = flat(R[2:])
            if base == "v_cndmask_b32" and len(ops) == 3:
                self.rd |= {("s", 106), ("s", 107)}
            if self.dpp and "bound_ctrl" not in mods:
                self.rd |= self.wr
        elif op.startswith("s_"):
            self.kind = "salu"
            if op.startswith(("s_cmp", "s_cbranch", "s_branch", "s_waitcnt", "s_nop", "s_barrier", "s_endpgm",
                              "s_setprio", "s_sleep")):
                self.rd = flat(R)
            elif op.startswith("s_load") or op.startswith("s_buffer_load"):
                self.kind = "smem"
                self.wr = flat(R[:1])
                self.rd = flat(R[1:])
            else:
                self.wr = flat(R[:1])
                self.rd = flat(R[1:])
                if "saveexec" in op:
                    self.wr |= {("s", 126), ("s", 127)}
        elif op.startswith(("buffer_", "global_", "flat_")):
            self.kind = "vmem"
            if "store" in op or "atomic" in op:
                self.rd = flat(R)
                self.is_store = True
                self.wide = ("x3" in op or "x4" in op)
                if op.startswith("buffer_"):
                    self.data = flat(R[:1])
                else:
                    self.data = flat(R[1:2])
            elif " lds" in (" " + mods):
                self.rd = flat(R) | {("s", 124)}
                self.ldsdma = True
            else:
                self.wr = flat(R[:1])
                self.rd = flat(R[1:])
                if "d16" in op:
                    self.rd |= self.wr
        elif op.startswith("ds_"):
            self.kind = "ds"
            if op.startswith(("ds_write", "ds_add")):
                self.rd = flat(R)
            else:
                self.wr = flat(R[:1])
                self.rd = flat(R[1:])

    def states(self):
        if self.op == "s_nop":
            return int(self.ops[0]) + 1
        return 1


def pad_hazards(lines):
    out = []
    for text in lines:
        ins = Ins(text)
        if ins.kind in ("label", "none"):
            out.append(ins)
            continue
        need = 0
        dist = 0
        for p in reversed(out):
            if p.kind in ("label", "none"):
                continue
            if dist >= 24:
                break
            req = 0
            if p.kind == "valu":
                wv = set(x for x in p.wr if x[0] in "va")
                ws = set(x for x in p.wr if x[0] == "s")
                if ins.kind == "mfma" and wv & ins.rd:
                    req = max(req, 2)
                if ins.kind == "valu":
                    if p.base in TRANS and ins.base not in TRANS and (wv & (ins.rd | ins.wr)):
                        req = max(req, 1)
                    if p.base in TRANS and (wv & ins.rd):
                        req = max(req, 1)
                    if ins.dpp and wv & ins.rd:
                        req = max(req, 2)
                    if getattr(ins, "permlane", False) and wv & ins.rd:
                        req = max(req, 2)
                    if ins.base in ("v_readlane_b32", "v_readfirstlane_b32") and wv & ins.rd:
                        req = max(req, 1)
                    if ws & ins.rd:
                        req = max(req, 4 if ins.base in ("v_readlane_b32", "v_writelane_b32") else 2)
                if ins.kind == "vmem" and ws & ins.rd:
                    req = max(req, 5)
                if ins.kind in ("salu", "smem") and ws & ins.rd:
                    req = max(req, 1)
            elif p.kind == "mfma":
                n = 12 if p.passes == 8 else 8
                if ins.kind == "mfma":
                    if p.wr & ins.srcAB:
                        req = max(req, n)
                    if p.wr & ins.srcC and not (p.wr == ins.srcC and p.passes == ins.passes):
                        req = max(req, 10 if p.passes == 8 else 6)
                else:
                    if p.wr & (ins.rd | ins.wr):
                        req = max(req, n)
                    if ins.kind == "valu" and p.srcC & ins.wr:
                        req = max(req, 7 if p.passes == 8 else 3)
            elif p.kind == "salu":
                if ("s", 124) in p.wr and getattr(ins, "ldsdma", False):
                    req = max(req, 1)
            elif p.kind == "vmem":
                if getattr(p, "is_store", False) and getattr(p, "wide", False) and (p.data & ins.wr):
                    req = max(req, 2)
            if req > dist:
                need = max(need, req - dist)
            dist += p.states()
        while need > 0:
            k = min(need, 16)
            out.append(Ins("s_nop %d" % (k - 1)))
            need -= k
        out.append(ins)
    return [i.text for i in out]


class Kern:
    def __init__(self, name):
        self.name = name
        self.L = []
        self.vm_issued = 0
        self.vm_tags = {}
        self.lg_issued = 0
        self.lg_tags = {}

    def I(self, s):
        for line in s.strip("\n").split("\n"):
            line = line.strip()
            if line:
                self.L.append(line)

    def VM(self, s, tag=None):
        self.I(s)
        self.vm_issued += 1
        if tag is not None:
            self.vm_tags[tag] = self.vm_issued

    def wait_vm(self, tag):
        n = self.vm_issued - self.vm_tags[tag]
        assert 0 <= n
        self.I("s_waitcnt vmcnt(%d)" % min(n, 63))

    def LG(self, s, tag=None):
        self.I(s)
        self.lg_issued += 1
        if tag is not None:
            self.lg_tags[tag] = self.lg_issued

    def wait_lg(self, tag):
        n = self.lg_issued - self.lg_tags[tag]
        assert 0 <= n
        self.I("s_waitcnt lgkmcnt(%d)" % min(n, 15))

    def text(self):
        body = pad_hazards(self.L)
        return "\n".join(("" if l.endswith(":") else "    ") + l for l in body)


def vr(a, n=1):
    return "v%d" % a if n == 1 else "v[%d:%d]" % (a, a + n - 1)


def sr(a, n=1):
    return "s%d" % a if n == 1 else "s[%d:%d]" % (a, a + n - 1)


def f32hex(x):
    import struct
    return "0x%08x" % struct.unpack("<I", struct.pack("<f", x))[0]
```

```python
from asmlib import *
import math

L_, D_, N_, F_ = 2048, 448, 256, 1792
UREV_OFF = 0
XT_OFF = 0x1D0000
WT_OFF = 0x3A0000
KT_OFF = 0x570000
W1F_OFF = 0x8C0000
W2F_OFF = 0xA50000
CS_OFF = 0xBE0000
HT_OFF = 0xBF0000
HF_OFF = 0xDC0000
WS_USED = 0x14C0000

UREV_PITCH = 4160
KT_PITCH = 7680

N_KGEN, N_LN1, N_W1, N_W2 = 448, 64, 28, 49
K1_WGS = N_KGEN + N_LN1 + N_W1 + N_W2
K1_LDS = 69632

L2E = 1.4426950408889634
L2E_HI = 47274.0 / 32768.0
L2E_LO = L2E - L2E_HI
LN2 = math.log(2.0)

P_U, P_LOGA, P_AIM, P_CR, P_CI, P_LOGDT, P_DSK, P_BX, P_W1, P_B1, P_W2, P_B2, P_WS = \
    16, 18, 20, 22, 24, 26, 28, 30, 32, 34, 36, 38, 40


def sp(p):
    return "s[%d:%d]" % (p, p + 1)


def dpp_reduce(k, op, regs):
    for mod in ("row_shr:1 row_mask:0xf bank_mask:0xf bound_ctrl:0",
                "row_shr:2 row_mask:0xf bank_mask:0xf bound_ctrl:0",
                "row_shr:4 row_mask:0xf bank_mask:0xf bound_ctrl:0",
                "row_shr:8 row_mask:0xf bank_mask:0xf bound_ctrl:0",
                "row_bcast:15 row_mask:0xa bank_mask:0xf",
                "row_bcast:31 row_mask:0xc bank_mask:0xf"):
        for r in regs:
            k.I("%s_dpp v%d, v%d, v%d %s" % (op, r, r, r, mod))


def exp_bf16(k, x, out, t0, t1, s_tmp):
    k.I("v_mul_f32 v%d, %s, v%d" % (t0, f32hex(L2E_HI), x))
    k.I("v_mul_f32 v%d, %s, v%d" % (t1, f32hex(L2E_LO * LN2), x))
    k.I("v_exp_f32 v%d, v%d" % (t0, t0))
    k.I("v_fma_f32 v%d, v%d, v%d, v%d" % (t0, t0, t1, t0))
    k.I("v_cvt_pk_bf16_f32 v%d, v%d, v%d" % (t0, t0, t0))
    k.I("v_lshlrev_b32 v%d, 16, v%d" % (out, t0))


def cmul(k, dr, di, ar, ai, br, bi, t):
    k.I("v_mul_f32 v%d, v%d, v%d" % (t, ai, bi))
    k.I("v_mul_f32 v%d, v%d, v%d" % (t + 1, ai, br))
    k.I("v_fma_f32 v%d, v%d, v%d, v%d" % (t + 1, ar, bi, t + 1))
    k.I("v_fma_f32 v%d, v%d, v%d, -v%d" % (dr, ar, br, t))
    k.I("v_mov_b32 v%d, v%d" % (di, t + 1))


def split_write(k, re_, im_, neg_im, addr, off_hi, off_lo, th, tl, t0, t1):
    n = "-" if neg_im else ""
    k.I("v_cvt_pk_bf16_f32 v%d, v%d, %sv%d" % (th, re_, n, im_))
    k.I("v_lshlrev_b32 v%d, 16, v%d" % (t0, th))
    k.I("v_and_b32 v%d, 0xffff0000, v%d" % (t1, th))
    k.I("v_sub_f32 v%d, v%d, v%d" % (t0, re_, t0))
    k.I("v_sub_f32_e64 v%d, %sv%d, v%d" % (t1, n, im_, t1))
    k.I("v_cvt_pk_bf16_f32 v%d, v%d, v%d" % (tl, t0, t1))
    k.LG("ds_write_b32 v%d, v%d offset:%d" % (addr, th, off_hi))
    k.LG("ds_write_b32 v%d, v%d offset:%d" % (addr, tl, off_lo))


def role_kgen(k):
    WBS = 17408
    FHI, FLO, GHI, GLO = 0, 4352, 8704, 13056
    TF = 4096
    MX = 8192
    k.I("K1_kgen:")
    k.I("s_lshl_b32 s3, s2, 9")
    k.I("v_lshlrev_b32 v1, 1, v0")
    k.I("v_add_u32 v1, s3, v1")
    k.I("s_lshl_b32 s4, s2, 1")
    k.I("v_mov_b32 v7, s4")
    k.I("s_waitcnt lgkmcnt(0)")
    k.VM("global_load_ushort v2, v1, %s" % sp(P_LOGA))
    k.VM("global_load_ushort v3, v1, %s" % sp(P_AIM))
    k.VM("global_load_ushort v4, v1, %s" % sp(P_CR))
    k.VM("global_load_ushort v5, v1, %s" % sp(P_CI))
    k.VM("global_load_ushort v6, v7, %s" % sp(P_LOGDT))
    k.I("v_lshrrev_b32 v46, 6, v0")
    k.I("v_mul_u32_u24 v46, %d, v46" % WBS)
    k.I("v_and_b32 v47, 63, v0")
    k.I("v_lshl_add_u32 v44, v47, 2, v46")
    k.I("v_and_b32 v8, 15, v0")
    k.I("v_mul_u32_u24 v8, 272, v8")
    k.I("v_lshrrev_b32 v9, 4, v47")
    k.I("v_lshlrev_b32 v9, 4, v9")
    k.I("v_add3_u32 v45, v46, v8, v9")
    k.I("s_waitcnt vmcnt(0)")
    for r in (2, 3, 4, 5, 6):
        k.I("v_lshlrev_b32 v%d, 16, v%d" % (r, r))
    exp_bf16(k, 6, 6, 8, 9, 5)
    exp_bf16(k, 2, 2, 8, 9, 5)
    k.I("v_mul_f32 v10, v2, v6")
    k.I("v_mul_f32 v11, v3, v6")
    k.I("v_mul_f32 v12, v4, v6")
    k.I("v_mul_f32 v13, v5, v6")
    k.I("v_add_f32 v36, v12, v12")
    k.I("v_add_f32 v37, v13, v13")
    k.I("v_mul_f32 v10, %s, v10" % f32hex(-L2E))
    k.I("v_mul_f32 v11, %s, v11" % f32hex(1.0 / (2 * math.pi)))
    for (p, r) in ((1, 14), (8, 16), (128, 18)):
        k.I("v_mul_f32 v8, %s, v10" % f32hex(float(p)))
        k.I("v_mul_f32 v9, %s, v11" % f32hex(float(p)))
        k.I("v_exp_f32 v8, v8")
        k.I("v_fract_f32 v9, v9")
        k.I("v_cos_f32 v%d, v9" % r)
        k.I("v_sin_f32 v%d, v9" % (r + 1))
        k.I("v_mul_f32 v%d, v8, v%d" % (r, r))
        k.I("v_mul_f32 v%d, v8, v%d" % (r + 1, r + 1))
    k.I("v_mov_b32 v20, v14")
    k.I("v_mov_b32 v21, v15")
    for e in range(2, 8):
        d = 20 + 2 * (e - 1)
        cmul(k, d, d + 1, d - 2, d - 1, 14, 15, 42)
    k.I("v_mov_b32 v34, 1.0")
    k.I("v_mov_b32 v35, 0")
    for j in range(16):
        if j == 1:
            k.I("v_mov_b32 v34, v16")
            k.I("v_mov_b32 v35, v17")
        elif j > 1:
            cmul(k, 34, 35, 34, 35, 16, 17, 42)
        split_write(k, 34, 35, False, 44, FHI + j * 272, FLO + j * 272, 40, 41, 8, 9)

    def writeG(row, e):
        if e == 0:
            split_write(k, 36, 37, True, 44, GHI + row * 272, GLO + row * 272, 40, 41, 8, 9)
        else:
            d = 20 + 2 * (e - 1)
            cmul(k, 38, 39, 36, 37, d, d + 1, 42)
            split_write(k, 38, 39, True, 44, GHI + row * 272, GLO + row * 272, 40, 41, 8, 9)

    def nextC():
        cmul(k, 36, 37, 36, 37, 18, 19, 42)

    FR, GR, ACC = 48, 80, 112
    for i in range(12):
        k.I("v_mov_b32 v%d, 0" % (ACC + i))
    for grp in range(3):
        if grp == 0:
            for kk in range(2):
                if kk:
                    nextC()
                for e in range(8):
                    writeG(8 * kk + e, e)
        elif grp == 1:
            for kk in range(2):
                nextC()
                for e in range(4):
                    writeG(4 * kk + e, 2 * e)
            for kk in range(4):
                nextC()
                for e in range(2):
                    writeG(8 + 2 * kk + e, 4 * e)
        else:
            for kk in range(9):
                nextC()
                writeG(kk, 0)
        if grp == 0:
            for s in range(4):
                k.LG("ds_read_b128 v[%d:%d], v45 offset:%d" % (FR + 8 * s, FR + 8 * s + 3, FHI + 64 * s))
                k.LG("ds_read_b128 v[%d:%d], v45 offset:%d" % (FR + 8 * s + 4, FR + 8 * s + 7, FLO + 64 * s))
        for s in range(4):
            k.LG("ds_read_b128 v[%d:%d], v45 offset:%d" % (GR + 8 * s, GR + 8 * s + 3, GHI + 64 * s))
            k.LG("ds_read_b128 v[%d:%d], v45 offset:%d" % (GR + 8 * s + 4, GR + 8 * s + 7, GLO + 64 * s))
        k.I("s_waitcnt lgkmcnt(0)")
        a = ACC + 4 * grp
        for s in range(4):
            gh, gl = GR + 8 * s, GR + 8 * s + 4
            fh, fl = FR + 8 * s, FR + 8 * s + 4
            for (x, y) in ((gl, fh), (gh, fl), (gh, fh)):
                k.I("v_mfma_f32_16x16x32_bf16 v[%d:%d], v[%d:%d], v[%d:%d], v[%d:%d]" %
                    (a, a + 3, x, x + 3, y, y + 3, a, a + 3))
    k.I("v_lshrrev_b32 v8, 4, v47")
    k.I("v_and_b32 v9, 15, v47")
    k.I("v_lshrrev_b32 v2, 1, v8")
    k.I("v_lshlrev_b32 v2, 7, v2")
    k.I("v_and_b32 v3, 1, v8")
    k.I("v_lshl_add_u32 v2, v3, 2, v2")
    k.I("v_lshl_add_u32 v2, v9, 3, v2")
    k.I("v_lshl_add_u32 v2, v2, 2, v46")
    k.I("v_cmp_gt_u32 vcc, 2, v8")
    k.I("v_lshlrev_b32 v3, 6, v8")
    k.I("v_add_u32 v3, 256, v3")
    k.I("v_lshlrev_b32 v4, 2, v9")
    k.I("v_lshlrev_b32 v5, 1, v9")
    k.I("v_cndmask_b32 v4, v5, v4, vcc")
    k.I("v_add_u32 v3, v3, v4")
    k.I("v_cndmask_b32_e64 v5, 32, 2, vcc")
    k.I("v_add_u32 v4, v3, v5")
    k.I("v_lshl_add_u32 v3, v3, 2, v46")
    k.I("v_lshl_add_u32 v4, v4, 2, v46")
    k.I("v_lshl_add_u32 v5, v8, 6, v9")
    k.I("v_add_u32 v5, 512, v5")
    k.I("v_lshl_add_u32 v5, v5, 2, v46")
    k.LG("ds_write_b128 v2, v[%d:%d]" % (ACC, ACC + 3))
    k.LG("ds_write_b64 v3, v[%d:%d]" % (ACC + 4, ACC + 5))
    k.LG("ds_write_b64 v4, v[%d:%d]" % (ACC + 6, ACC + 7))
    for r in range(4):
        k.LG("ds_write_b32 v5, v%d offset:%d" % (ACC + 8 + r, 64 * r))
    k.I("s_waitcnt lgkmcnt(0)")
    k.I("s_barrier")
    k.I("v_lshlrev_b32 v1, 2, v0")
    for i in range(3):
        for w in range(4):
            k.LG("ds_read_b32 v%d, v1 offset:%d" % (10 + 4 * i + w, w * WBS + i * 1024))
    k.I("s_waitcnt lgkmcnt(0)")
    for i in range(3):
        b = 10 + 4 * i
        k.I("v_add_f32 v%d, v%d, v%d" % (b, b, b + 1))
        k.I("v_add_f32 v%d, v%d, v%d" % (b + 2, b + 2, b + 3))
        k.I("v_add_f32 v%d, v%d, v%d" % (b, b, b + 2))
    k.I("v_cmp_ge_u32 vcc, 128, v0")
    k.I("v_cndmask_b32 v18, 0, v18, vcc")
    for i in range(3):
        k.LG("ds_write_b32 v1, v%d offset:%d" % (10 + 4 * i, TF + i * 1024))
    k.I("v_max3_f32 v2, |v10|, |v14|, |v18|")
    dpp_reduce(k, "v_max_f32", [2])
    k.I("v_readlane_b32 s5, v2, 63")
    k.I("v_lshrrev_b32 v3, 6, v0")
    k.I("v_lshlrev_b32 v3, 2, v3")
    k.I("v_mov_b32 v4, s5")
    k.LG("ds_write_b32 v3, v4 offset:%d" % MX)
    k.I("s_waitcnt lgkmcnt(0)")
    k.I("s_barrier")
    k.I("v_mov_b32 v3, 0")
    k.LG("ds_read_b128 v[4:7], v3 offset:%d" % MX)
    k.I("v_lshlrev_b32 v8, 3, v0")
    k.I("v_cmp_gt_u32 vcc, 16, v0")
    for i in range(0, 8, 2):
        a = 20 + i
        k.I("v_add_u32 v%d, %d, v8" % (a, i))
        k.I("v_add_u32 v%d, %d, v8" % (a + 1, i + 1))
        k.I("v_cvt_f32_u32 v10, v%d" % a)
        k.I("v_cvt_f32_u32 v11, v%d" % (a + 1))
        k.I("v_cvt_pk_bf16_f32 v10, v10, v11")
        k.I("v_and_b32 v11, 0xffff, v10")
        k.I("v_lshrrev_b32 v10, 16, v10")
        k.I("v_subrev_u32 v11, 17024, v11")
        k.I("v_subrev_u32 v10, 17024, v10")
        k.I("v_cndmask_b32 v%d, v11, v%d, vcc" % (a, a))
        k.I("v_cndmask_b32 v%d, v10, v%d, vcc" % (a + 1, a + 1))
    for i in range(8):
        k.I("v_lshlrev_b32 v%d, 2, v%d" % (20 + i, 20 + i))
    k.I("s_waitcnt lgkmcnt(0)")
    k.I("v_max3_f32 v4, v4, v5, v6")
    k.I("v_max_f32 v4, v4, v7")
    for i in range(8):
        k.LG("ds_read_b32 v%d, v%d offset:%d" % (30 + i, 20 + i, TF))
    k.I("v_frexp_exp_i32_f32 v5, v4")
    k.I("v_mov_b32 v6, 100")
    k.I("v_min_i32 v5, v5, v6")
    k.I("v_mov_b32 v6, -100")
    k.I("v_max_i32 v5, v5, v6")
    k.I("v_sub_u32 v6, 14, v5")
    k.I("v_ldexp_f32 v6, 1.0, v6")
    k.I("v_subrev_u32 v7, 14, v5")
    k.I("v_ldexp_f32 v7, 1.0, v7")
    k.I("s_waitcnt lgkmcnt(0)")
    for i in range(8):
        k.I("v_mul_f32 v%d, v6, v%d" % (30 + i, 30 + i))
    for i in range(8):
        k.I("v_cvt_f16_f32 v%d, v%d" % (30 + i, 30 + i))
    for i in range(4):
        k.I("v_pack_b32_f16 v%d, v%d, v%d" % (40 + i, 30 + 2 * i, 31 + 2 * i))
    k.I("s_mul_i32 s6, s2, %d" % KT_PITCH)
    k.I("s_add_u32 s6, s6, %d" % KT_OFF)
    k.I("v_lshrrev_b32 v8, 2, v0")
    k.I("v_mul_u32_u24 v8, 80, v8")
    k.I("v_and_b32 v9, 3, v0")
    k.I("v_lshl_add_u32 v8, v9, 4, v8")
    k.I("v_add_u32 v8, s6, v8")
    k.VM("global_store_dwordx4 v8, v[40:43], %s offset:%d" % (sp(P_WS), 31 * 80))
    k.I("v_mov_b32 v44, 0")
    k.I("v_mov_b32 v45, 0")
    k.I("v_mov_b32 v46, 0")
    k.I("v_mov_b32 v47, 0")
    k.I("v_lshlrev_b32 v9, 4, v0")
    k.I("v_add_u32 v9, s6, v9")
    k.I("s_mul_i32 s7, s2, %d" % UREV_PITCH)
    k.I("s_add_u32 s7, s7, %d" % (UREV_OFF + 4096 - 160 * 16))
    k.I("v_lshlrev_b32 v10, 4, v0")
    k.I("v_add_u32 v10, s7, v10")
    k.I("v_cmp_lt_u32 vcc, 159, v0")
    k.I("v_cndmask_b32 v9, v9, v10, vcc")
    k.I("s_mov_b64 s[8:9], vcc")
    k.I("v_cmp_gt_u32 vcc, 164, v0")
    k.I("s_and_b64 s[8:9], s[8:9], vcc")
    k.I("v_cmp_gt_u32 vcc, 155, v0")
    k.I("s_or_b64 vcc, vcc, s[8:9]")
    k.I("s_and_saveexec_b64 s[12:13], vcc")
    k.VM("global_store_dwordx4 v9, v[44:47], %s" % sp(P_WS))
    k.I("s_mov_b64 exec, s[12:13]")
    k.I("v_mov_b32 v9, s6")
    k.I("v_cmp_eq_u32 vcc, 0, v0")
    k.I("s_and_saveexec_b64 s[12:13], vcc")
    k.I("v_add_u32 v9, 7600, v9")
    k.VM("global_store_dword v9, v7, %s" % sp(P_WS))
    k.I("s_mov_b64 exec, s[12:13]")
    k.I("s_endpgm")


def role_ln1(k):
    k.I("K1_ln1:")
    k.I("s_sub_u32 s3, s2, %d" % N_KGEN)
    k.I("v_lshrrev_b32 v1, 6, v0")
    k.I("s_nop 0")
    k.I("v_readfirstlane_b32 s4, v1")
    k.I("s_lshl_b32 s3, s3, 5")
    k.I("s_lshl_b32 s4, s4, 3")
    k.I("s_add_u32 s3, s3, s4")
    k.I("v_and_b32 v1, 63, v0")
    k.I("s_mul_i32 s5, s3, 896")
    k.I("v_lshlrev_b32 v2, 4, v1")
    k.I("v_add_u32 v3, s5, v2")
    X, XF = 8, 48
    for i in range(8 * 4 + 4):
        k.I("v_mov_b32 v%d, 0" % (X + i))
    k.I("v_cmp_gt_u32 vcc, 56, v1")
    k.I("s_waitcnt lgkmcnt(0)")
    k.I("s_and_saveexec_b64 s[12:13], vcc")
    for r in range(8):
        k.VM("global_load_dwordx4 v[%d:%d], v3, %s offset:%d" % (X + 4 * r, X + 4 * r + 3, sp(P_U), 896 * r if 896 * r < 4096 else 0)
             if 896 * r < 4096 else
             "global_load_dwordx4 v[%d:%d], v4, %s offset:%d" % (X + 4 * r, X + 4 * r + 3, sp(P_U), 896 * (r - 4)))
        if r == 3:
            k.I("v_add_u32 v4, %d, v3" % (896 * 4))
    k.VM("global_load_dwordx4 v[40:43], v2, %s" % sp(P_DSK))
    k.I("s_mov_b64 exec, s[12:13]")
    k.I("s_waitcnt vmcnt(0)")
    for r in range(8):
        for cp in range(4):
            s = X + 4 * r + cp
            d = XF + 8 * r + 2 * cp
            k.I("v_lshlrev_b32 v%d, 16, v%d" % (d, s))
            k.I("v_and_b32 v%d, 0xffff0000, v%d" % (d + 1, s))
    DS = 112
    for cp in range(4):
        k.I("v_lshlrev_b32 v%d, 16, v%d" % (DS + 2 * cp, 40 + cp))
        k.I("v_and_b32 v%d, 0xffff0000, v%d" % (DS + 2 * cp + 1, 40 + cp))
    S = 120
    for r in range(8):
        b = XF + 8 * r
        k.I("v_add_f32 v%d, v%d, v%d" % (S + r, b, b + 1))
    for c in range(2, 8):
        for r in range(8):
            k.I("v_add_f32 v%d, v%d, v%d" % (S + r, S + r, XF + 8 * r + c))
    dpp_reduce(k, "v_add_f32", [S + r for r in range(8)])
    for r in range(8):
        k.I("v_readlane_b32 s%d, v%d, 63" % (44 + r, S + r))
    MEAN = 128
    for r in range(8):
        k.I("v_mov_b32 v%d, %s" % (S + r, f32hex(1.0 / 448)))
    for r in range(8):
        k.I("v_mul_f32 v%d, s%d, v%d" % (MEAN + r, 44 + r, S + r))
    for r in range(8):
        k.I("v_mov_b32 v%d, 0" % (S + r))
    k.I("s_and_saveexec_b64 s[12:13], vcc")
    for c in range(8):
        for r in range(8):
            k.I("v_sub_f32 v%d, v%d, v%d" % (136 + r, XF + 8 * r + c, MEAN + r))
        for r in range(8):
            k.I("v_fmac_f32 v%d, v%d, v%d" % (S + r, 136 + r, 136 + r))
    k.I("s_mov_b64 exec, s[12:13]")
    dpp_reduce(k, "v_add_f32", [S + r for r in range(8)])
    for r in range(8):
        k.I("v_readlane_b32 s%d, v%d, 63" % (44 + r, S + r))
    SD, RI = 136, 144
    for r in range(8):
        k.I("v_mov_b32 v%d, %s" % (S + r, f32hex(1.0 / 448)))
    for r in range(8):
        k.I("v_mul_f32 v%d, s%d, v%d" % (S + r, 44 + r, S + r))
    for r in range(8):
        k.I("v_cvt_pk_bf16_f32 v%d, v%d, v%d" % (S + r, S + r, MEAN + r))
    for r in range(8):
        k.I("v_and_b32 v%d, 0xffff0000, v%d" % (MEAN + r, S + r))
        k.I("v_lshlrev_b32 v%d, 16, v%d" % (S + r, S + r))
    for r in range(8):
        k.I("v_add_f32 v%d, %s, v%d" % (S + r, f32hex(1e-5), S + r))
    for r in range(8):
        k.I("v_cvt_pk_bf16_f32 v%d, v%d, v%d" % (S + r, S + r, S + r))
    for r in range(8):
        k.I("v_lshlrev_b32 v%d, 16, v%d" % (S + r, S + r))
    for r in range(8):
        k.I("v_sqrt_f32 v%d, v%d" % (S + r, S + r))
    for r in range(8):
        k.I("v_cvt_pk_bf16_f32 v%d, v%d, v%d" % (S + r, S + r, S + r))
    for r in range(8):
        k.I("v_lshlrev_b32 v%d, 16, v%d" % (SD + r, S + r))
    for r in range(8):
        k.I("v_rcp_f32 v%d, v%d" % (RI + r, SD + r))
    T = 152
    for r in range(8):
        b = XF + 8 * r
        for c in range(8):
            k.I("v_sub_f32 v%d, v%d, v%d" % (b + c, b + c, MEAN + r))
        for c in range(0, 8, 2):
            k.I("v_cvt_pk_bf16_f32 v%d, v%d, v%d" % (T + c // 2, b + c, b + c + 1))
        for c in range(0, 8, 2):
            k.I("v_lshlrev_b32 v%d, 16, v%d" % (b + c, T + c // 2))
            k.I("v_and_b32 v%d, 0xffff0000, v%d" % (b + c + 1, T + c // 2))
        for c in range(8):
            k.I("v_mul_f32 v%d, v%d, v%d" % (T + c, b + c, RI + r))
        for c in range(8):
            k.I("v_fma_f32 v%d, -v%d, v%d, v%d" % (b + c, T + c, SD + r, b + c))
        for c in range(8):
            k.I("v_fma_f32 v%d, v%d, v%d, v%d" % (b + c, b + c, RI + r, T + c))
        for c in range(0, 8, 2):
            k.I("v_cvt_pk_bf16_f32 v%d, v%d, v%d" % (T + c // 2, b + c, b + c + 1))
        for c in range(0, 8, 2):
            k.I("v_lshlrev_b32 v%d, 16, v%d" % (b + c, T + c // 2))
            k.I("v_and_b32 v%d, 0xffff0000, v%d" % (b + c + 1, T + c // 2))
    k.I("v_lshlrev_b32 v4, 15, v1")
    k.I("s_lshl_b32 s6, s3, 1")
    k.I("v_add_u32 v4, s6, v4")
    k.I("v_mul_u32_u24 v5, %d, v1" % (8 * UREV_PITCH))
    k.I("s_sub_u32 s7, 2040, s3")
    k.I("s_lshl_b32 s7, s7, 1")
    k.I("v_add_u32 v5, s7, v5")
    k.I("s_mov_b32 s8, 0x05040100")
    k.I("s_mov_b32 s9, 0x07060302")
    k.I("s_and_saveexec_b64 s[12:13], vcc")
    O = 160
    for c in range(8):
        o = O + 12 * (c % 2)
        for rp in range(4):
            a = X + 4 * (2 * rp) + c // 2
            b = X + 4 * (2 * rp + 1) + c // 2
            k.I("v_perm_b32 v%d, v%d, v%d, s%d" % (o + rp, b, a, 8 + (c % 2)))
        for rp in range(4):
            k.I("v_mul_f32 v%d, v%d, v%d" % (T, XF + 8 * (2 * rp) + c, DS + c))
            k.I("v_mul_f32 v%d, v%d, v%d" % (T + 1, XF + 8 * (2 * rp + 1) + c, DS + c))
            k.I("v_cvt_pk_bf16_f32 v%d, v%d, v%d" % (o + 4 + rp, T, T + 1))
        for rp in range(4):
            k.I("v_cvt_pkrtz_f16_f32 v%d, v%d, v%d" % (o + 8 + rp, XF + 8 * (7 - 2 * rp) + c, XF + 8 * (6 - 2 * rp) + c))
        k.I("v_add_u32 v6, %d, v4" % (c * 4096 + XT_OFF))
        k.I("v_add_u32 v7, %d, v4" % (c * 4096 + WT_OFF))
        k.I("v_add_u32 v2, %d, v5" % (c * UREV_PITCH + UREV_OFF))
        k.VM("global_store_dwordx4 v6, v[%d:%d], %s" % (o, o + 3, sp(P_WS)))
        k.VM("global_store_dwordx4 v7, v[%d:%d], %s" % (o + 4, o + 7, sp(P_WS)))
        k.VM("global_store_dwordx4 v2, v[%d:%d], %s" % (o + 8, o + 11, sp(P_WS)))
    k.I("s_mov_b64 exec, s[12:13]")
    k.I("s_endpgm")


ROWS8 = [0, 1, 2, 3, 8, 9, 10, 11]


def transpose8(k, R, O, colsum=None):
    for c in range(8):
        for rp in range(4):
            a = R + 4 * (2 * rp) + c // 2
            b = R + 4 * (2 * rp + 1) + c // 2
            k.I("v_perm_b32 v%d, v%d, v%d, s%d" % (O + 4 * c + rp, b, a, 8 + (c % 2)))
        if colsum is not None:
            for rp in range(4):
                k.I("v_dot2_f32_bf16 v%d, v%d, v%d, v%d" % (colsum + c, O + 4 * c + rp, colsum + 8, colsum + c))


def role_w1(k):
    k.I("K1_w1:")
    k.I("s_sub_u32 s3, s2, %d" % (N_KGEN + N_LN1))
    k.I("s_mov_b32 s8, 0x05040100")
    k.I("s_mov_b32 s9, 0x07060302")
    k.I("v_and_b32 v1, 7, v0")
    k.I("v_lshrrev_b32 v2, 3, v0")
    CS = 100
    for c in range(8):
        k.I("v_mov_b32 v%d, 0" % (CS + c))
    k.I("v_mov_b32 v%d, 0x3f803f80" % (CS + 8))
    k.I("s_waitcnt lgkmcnt(0)")
    for ps in range(2):
        k.I("v_add_u32 v3, %d, v2" % (32 * ps))
        if ps == 1:
            k.I("v_cmp_gt_u32 vcc, 56, v3")
            k.I("s_and_saveexec_b64 s[12:13], vcc")
            k.I("s_cbranch_execz K1_w1_skip")
        k.I("v_lshrrev_b32 v4, 1, v3")
        k.I("v_and_b32 v5, 1, v3")
        k.I("v_lshlrev_b32 v6, 4, v4")
        k.I("v_lshl_add_u32 v6, v5, 2, v6")
        k.I("v_mul_u32_u24 v6, 3584, v6")
        k.I("s_lshl_b32 s4, s3, 7")
        k.I("v_lshl_add_u32 v6, v1, 4, v6")
        k.I("v_add_u32 v6, s4, v6")
        R, O = 8, 48
        for i, rr in enumerate(ROWS8):
            if rr == 0:
                k.VM("global_load_dwordx4 v[%d:%d], v6, %s" % (R + 4 * i, R + 4 * i + 3, sp(P_W1)))
            else:
                k.I("v_add_u32 v7, %d, v6" % (3584 * rr))
                k.VM("global_load_dwordx4 v[%d:%d], v7, %s" % (R + 4 * i, R + 4 * i + 3, sp(P_W1)))
        k.I("v_lshrrev_b32 v7, 2, v1")
        k.I("s_lshl_b32 s5, s3, 1")
        k.I("v_add_u32 v7, s5, v7")
        k.I("v_mul_u32_u24 v7, 28, v7")
        k.I("v_add_u32 v7, v7, v4")
        k.I("v_lshlrev_b32 v7, 6, v7")
        k.I("v_and_b32 v80, 3, v1")
        k.I("v_lshl_add_u32 v7, v80, 3, v7")
        k.I("v_lshl_add_u32 v7, v5, 5, v7")
        k.I("v_lshlrev_b32 v7, 4, v7")
        k.I("v_add_u32 v7, %d, v7" % W1F_OFF)
        k.I("s_waitcnt vmcnt(0)")
        transpose8(k, R, O, CS)
        for c in range(8):
            k.VM("global_store_dwordx4 v7, v[%d:%d], %s offset:%d" % (O + 4 * c, O + 4 * c + 3, sp(P_WS), 16 * c))
        if ps == 1:
            k.I("K1_w1_skip:")
            k.I("s_mov_b64 exec, s[12:13]")
    k.I("v_lshlrev_b32 v3, 8, v2")
    k.I("v_lshl_add_u32 v3, v1, 5, v3")
    k.LG("ds_write_b128 v3, v[%d:%d]" % (CS, CS + 3))
    k.LG("ds_write_b128 v3, v[%d:%d] offset:16" % (CS + 4, CS + 7))
    k.I("s_waitcnt lgkmcnt(0)")
    k.I("s_barrier")
    k.I("v_cmp_gt_u32 vcc, 64, v0")
    k.I("s_and_saveexec_b64 s[12:13], vcc")
    k.I("s_cbranch_execz K1_w1_end")
    k.I("v_lshlrev_b32 v3, 2, v0")
    for o in range(32):
        k.LG("ds_read_b32 v%d, v3 offset:%d" % (10 + o, 256 * o))
    k.I("s_waitcnt lgkmcnt(0)")
    for st in (16, 8, 4, 2, 1):
        for o in range(st):
            k.I("v_add_f32 v%d, v%d, v%d" % (10 + o, 10 + o, 10 + o + st))
    k.I("s_lshl_b32 s4, s3, 8")
    k.I("s_add_u32 s4, s4, %d" % CS_OFF)
    k.I("v_add_u32 v3, s4, v3")
    k.VM("global_store_dword v3, v10, %s" % sp(P_WS))
    k.I("K1_w1_end:")
    k.I("s_endpgm")


def role_w2(k):
    k.I("K1_w2:")
    k.I("s_sub_u32 s3, s2, %d" % (N_KGEN + N_LN1 + N_W1))
    k.I("s_mov_b32 s8, 0x05040100")
    k.I("s_mov_b32 s9, 0x07060302")
    k.I("s_lshl_b32 s3, s3, 8")
    k.I("v_add_u32 v1, s3, v0")
    k.I("v_mul_u32_u24 v3, 18725, v1")
    k.I("v_lshrrev_b32 v3, 20, v3")
    k.I("v_mul_u32_u24 v4, 56, v3")
    k.I("v_sub_u32 v1, v1, v4")
    k.I("v_lshrrev_b32 v4, 1, v3")
    k.I("v_and_b32 v5, 1, v3")
    k.I("v_lshlrev_b32 v6, 4, v4")
    k.I("v_lshl_add_u32 v6, v5, 2, v6")
    k.I("v_mul_u32_u24 v6, 896, v6")
    k.I("v_lshl_add_u32 v6, v1, 4, v6")
    k.I("s_waitcnt lgkmcnt(0)")
    R, O = 8, 48
    for i, rr in enumerate(ROWS8):
        if 896 * rr < 4096:
            k.VM("global_load_dwordx4 v[%d:%d], v6, %s offset:%d" % (R + 4 * i, R + 4 * i + 3, sp(P_W2), 896 * rr))
        else:
            if rr == 8:
                k.I("v_add_u32 v7, %d, v6" % (896 * 8))
            k.VM("global_load_dwordx4 v[%d:%d], v7, %s offset:%d" % (R + 4 * i, R + 4 * i + 3, sp(P_W2), 896 * (rr - 8)))
    k.I("v_lshrrev_b32 v7, 2, v1")
    k.I("v_mul_u32_u24 v7, 112, v7")
    k.I("v_add_u32 v7, v7, v4")
    k.I("v_lshlrev_b32 v7, 6, v7")
    k.I("v_and_b32 v80, 3, v1")
    k.I("v_lshl_add_u32 v7, v80, 3, v7")
    k.I("v_lshl_add_u32 v7, v5, 5, v7")
    k.I("v_lshlrev_b32 v7, 4, v7")
    k.I("v_add_u32 v7, %d, v7" % W2F_OFF)
    k.I("s_waitcnt vmcnt(0)")
    transpose8(k, R, O, None)
    for c in range(8):
        k.VM("global_store_dwordx4 v7, v[%d:%d], %s offset:%d" % (O + 4 * c, O + 4 * c + 3, sp(P_WS), 16 * c))
    k.I("s_endpgm")


def gen_k1():
    k = Kern("k1_prep_kernel")
    k.I("s_cmp_ge_u32 s2, %d" % K1_WGS)
    k.I("s_cbranch_scc1 K1_exit")
    k.I("s_load_dwordx16 s[16:31], s[0:1], 0")
    k.I("s_load_dwordx8 s[32:39], s[0:1], 64")
    k.I("s_load_dwordx2 s[40:41], s[0:1], 112")
    k.I("s_cmp_lt_u32 s2, %d" % N_KGEN)
    k.I("s_cbranch_scc1 K1_kgen")
    k.I("s_cmp_lt_u32 s2, %d" % (N_KGEN + N_LN1))
    k.I("s_cbranch_scc1 K1_ln1")
    k.I("s_cmp_lt_u32 s2, %d" % (N_KGEN + N_LN1 + N_W1))
    k.I("s_cbranch_scc1 K1_w1")
    k.I("s_branch K1_w2")
    k.I("K1_exit:")
    k.I("s_endpgm")
    role_kgen(k)
    role_ln1(k)
    role_w1(k)
    role_w2(k)
    return k
```

```python
from asmlib import *
from gen_k1 import *

K2_WGS = 448
UC, KTB, RED = 0, 33280, 40960
K2_LDS = RED + 32768


def gen_k2():
    k = Kern("k2_conv_kernel")
    k.I("s_cmp_ge_u32 s2, %d" % K2_WGS)
    k.I("s_cbranch_scc1 K2_exit")
    k.I("s_load_dwordx2 s[40:41], s[0:1], 112")
    k.I("v_lshrrev_b32 v1, 6, v0")
    k.I("v_and_b32 v2, 63, v0")
    k.I("v_readfirstlane_b32 s4, v1")
    k.I("s_mul_i32 s5, s2, %d" % UREV_PITCH)
    k.I("s_mul_i32 s6, s2, %d" % KT_PITCH)
    k.I("s_add_u32 s6, s6, %d" % KT_OFF)
    k.I("v_lshlrev_b32 v3, 4, v0")
    k.I("v_add_u32 v4, s5, v3")
    k.I("v_add_u32 v5, s6, v3")
    k.I("s_waitcnt lgkmcnt(0)")
    k.I("s_add_u32 s8, s40, s6")
    k.I("s_addc_u32 s9, s41, 0")
    k.I("s_load_dword s10, s[8:9], 7600")
    k.VM("global_load_dwordx4 v[8:11], v4, s[40:41]")
    k.VM("global_load_dwordx4 v[12:15], v4, s[40:41] offset:16", "u")
    k.VM("global_load_dwordx4 v[16:19], v5, s[40:41]")
    k.I("v_add_u32 v6, 4096, v5")
    k.I("v_cmp_gt_u32 vcc, 224, v0")
    k.I("s_and_saveexec_b64 s[12:13], vcc")
    k.VM("global_load_dwordx4 v[20:23], v6, s[40:41]", "kt")
    k.I("s_mov_b64 exec, s[12:13]")
    k.I("s_lshr_b32 s14, s4, 1")
    k.I("s_lshl_b32 s14, s14, 11")
    k.I("s_and_b32 s15, s4, 1")
    k.I("s_lshl_b32 s15, s15, 5")
    k.I("s_add_u32 s14, s14, s15")
    k.I("s_lshl_b32 s15, s2, 12")
    k.I("s_add_u32 s14, s14, s15")
    k.I("v_and_b32 v7, 31, v2")
    k.I("v_lshlrev_b32 v7, 6, v7")
    k.I("v_lshrrev_b32 v64, 5, v2")
    k.I("v_lshl_add_u32 v7, v64, 3, v7")
    k.I("v_add_u32 v7, s14, v7")
    k.I("v_add_u32 v64, %d, v7" % XT_OFF)
    k.I("v_add_u32 v65, %d, v7" % WT_OFF)
    k.I("v_add_u32 v7, %d, v7" % HT_OFF)
    k.VM("global_load_dwordx2 v[24:25], v64, s[40:41]")
    k.VM("global_load_dwordx2 v[26:27], v64, s[40:41] offset:16")
    k.VM("global_load_dwordx2 v[28:29], v65, s[40:41]")
    k.VM("global_load_dwordx2 v[30:31], v65, s[40:41] offset:16", "ep")
    k.I("v_mov_b32 v68, 0")
    k.I("v_mov_b32 v69, 0")
    k.I("v_mov_b32 v70, 0")
    k.I("v_mov_b32 v71, 0")
    k.I("v_lshrrev_b32 v66, 2, v0")
    k.I("v_mul_u32_u24 v66, 4160, v66")
    k.I("v_and_b32 v67, 3, v0")
    k.I("v_lshl_add_u32 v66, v67, 4, v66")
    k.I("v_cmp_gt_u32 vcc, 32, v0")
    k.I("s_and_saveexec_b64 s[12:13], vcc")
    k.LG("ds_write_b128 v66, v[68:71] offset:%d" % (UC + 4096))
    k.I("s_mov_b64 exec, s[12:13]")
    k.wait_vm("u")
    for c in range(8):
        if c % 2 == 0:
            src = 8 + c // 2
            if src % 2 == 0:
                k.LG("ds_write_b128 v3, v[%d:%d] offset:%d" % (src, src + 3, UC + c * 4160))
            else:
                for i in range(4):
                    k.I("v_mov_b32 v%d, v%d" % (72 + i, src + i))
                k.LG("ds_write_b128 v3, v[72:75] offset:%d" % (UC + c * 4160))
        else:
            b = 8 + (c - 1) // 2
            o = 76 + 4 * ((c // 2) % 2)
            for i in range(4):
                k.I("v_alignbyte_b32 v%d, v%d, v%d, 2" % (o + i, b + i + 1, b + i))
            k.LG("ds_write_b128 v3, v[%d:%d] offset:%d" % (o, o + 3, UC + c * 4160))
    k.wait_vm("kt")
    k.LG("ds_write_b128 v3, v[16:19] offset:%d" % KTB)
    k.I("v_cmp_gt_u32 vcc, 224, v0")
    k.I("s_and_saveexec_b64 s[12:13], vcc")
    k.LG("ds_write_b128 v3, v[20:23] offset:%d" % (KTB + 4096))
    k.I("s_mov_b64 exec, s[12:13]")
    k.I("v_and_b32 v64, 7, v2")
    k.I("v_sub_u32 v64, 7, v64")
    k.I("v_mul_u32_u24 v64, 4160, v64")
    k.I("v_lshrrev_b32 v65, 5, v2")
    k.I("v_bfe_u32 v66, v2, 3, 2")
    k.I("v_sub_u32 v66, v65, v66")
    k.I("s_lshl_b32 s14, s4, 1")
    k.I("s_sub_u32 s14, 9, s14")
    k.I("v_add_u32 v66, s14, v66")
    k.I("v_lshl_add_u32 v4, v66, 4, v64")
    k.I("s_lshr_b32 s14, s4, 1")
    k.I("s_sub_u32 s14, 1, s14")
    k.I("s_mul_i32 s14, s14, 80")
    k.I("s_and_b32 s15, s4, 1")
    k.I("s_xor_b32 s15, s15, 1")
    k.I("s_lshl_b32 s15, s15, 5")
    k.I("s_add_u32 s14, s14, s15")
    k.I("s_add_u32 s14, s14, %d" % KTB)
    k.I("v_and_b32 v64, 31, v2")
    k.I("v_mul_u32_u24 v64, 80, v64")
    k.I("v_lshl_add_u32 v64, v65, 4, v64")
    k.I("v_add_u32 v5, s14, v64")
    k.I("s_waitcnt lgkmcnt(0)")
    k.I("s_barrier")
    ACC0, ACC1, BUF = 32, 48, 72

    def issue(jj):
        b = BUF + 16 * (jj % 3)
        k.LG("ds_read_b128 v[%d:%d], v4 offset:%d" % (b, b + 3, (31 - jj) * 128))
        k.LG("ds_read_b128 v[%d:%d], v5 offset:%d" % (b + 8, b + 11, (31 - jj) * 160))
        k.LG("ds_read_b128 v[%d:%d], v4 offset:%d" % (b + 4, b + 7, (15 - jj) * 128))
        k.LG("ds_read_b128 v[%d:%d], v5 offset:%d" % (b + 12, b + 15, (15 - jj) * 160), ("it", jj))

    issue(0)
    issue(1)
    for jj in range(16):
        if jj + 2 < 16:
            issue(jj + 2)
        k.wait_lg(("it", jj))
        b = BUF + 16 * (jj % 3)
        c0 = "0" if jj == 0 else "v[%d:%d]" % (ACC0, ACC0 + 15)
        c1 = "0" if jj == 0 else "v[%d:%d]" % (ACC1, ACC1 + 15)
        k.I("v_mfma_f32_32x32x16_f16 v[%d:%d], v[%d:%d], v[%d:%d], %s" % (ACC1, ACC1 + 15, b, b + 3, b + 8, b + 11, c1))
        k.I("v_mfma_f32_32x32x16_f16 v[%d:%d], v[%d:%d], v[%d:%d], %s" % (ACC0, ACC0 + 15, b, b + 3, b + 12, b + 15, c0))
        k.I("v_mfma_f32_32x32x16_f16 v[%d:%d], v[%d:%d], v[%d:%d], v[%d:%d]" % (ACC1, ACC1 + 15, b + 4, b + 7, b + 12, b + 15, ACC1, ACC1 + 15))
    k.I("s_lshl_b32 s14, s4, 13")
    k.I("s_add_u32 s14, s14, %d" % RED)
    k.I("v_lshlrev_b32 v64, 4, v2")
    k.I("v_add_u32 v65, s14, v64")
    k.I("s_lshl_b32 s15, s4, 11")
    k.I("s_add_u32 s15, s15, %d" % RED)
    k.I("v_add_u32 v66, s15, v64")
    for t in range(2):
        for q in range(4):
            a = (ACC0 if t == 0 else ACC1) + 4 * q
            k.LG("ds_write_b128 v65, v[%d:%d] offset:%d" % (a, a + 3, (4 * t + q) * 1024))
    k.I("s_waitcnt lgkmcnt(0)")
    k.I("s_barrier")
    R = 72
    for qq in range(2):
        for w in range(4):
            r = R + 16 * qq + 4 * w
            k.LG("ds_read_b128 v[%d:%d], v66 offset:%d" % (r, r + 3, w * 8192 + qq * 1024))
    k.I("s_waitcnt lgkmcnt(0)")
    for qq in range(2):
        r = R + 16 * qq
        for i in range(4):
            k.I("v_add_f32 v%d, v%d, v%d" % (r + i, r + i, r + 4 + i))
            k.I("v_add_f32 v%d, v%d, v%d" % (r + 8 + i, r + 8 + i, r + 12 + i))
        for i in range(4):
            k.I("v_add_f32 v%d, v%d, v%d" % (r + i, r + i, r + 8 + i))
        for i in range(4):
            k.I("v_mul_f32 v%d, s10, v%d" % (r + i, r + i))
    k.wait_vm("ep")
    for qq in range(2):
        r = R + 16 * qq
        xs, ws = 24 + 2 * qq, 28 + 2 * qq
        for p in range(2):
            a, b = r + 2 * p, r + 2 * p + 1
            t0, t1, t2 = r + 4, r + 5, r + 6
            k.I("v_cvt_pk_bf16_f32 v%d, v%d, v%d" % (t0, a, b))
            k.I("v_lshlrev_b32 v%d, 16, v%d" % (a, t0))
            k.I("v_and_b32 v%d, 0xffff0000, v%d" % (b, t0))
            k.I("v_lshlrev_b32 v%d, 16, v%d" % (t1, ws + p))
            k.I("v_and_b32 v%d, 0xffff0000, v%d" % (t2, ws + p))
            k.I("v_add_f32 v%d, v%d, v%d" % (a, a, t1))
            k.I("v_add_f32 v%d, v%d, v%d" % (b, b, t2))
            k.I("v_cvt_pk_bf16_f32 v%d, v%d, v%d" % (t0, a, b))
            k.I("v_lshlrev_b32 v%d, 16, v%d" % (a, t0))
            k.I("v_and_b32 v%d, 0xffff0000, v%d" % (b, t0))
            k.I("v_lshlrev_b32 v%d, 16, v%d" % (t1, xs + p))
            k.I("v_and_b32 v%d, 0xffff0000, v%d" % (t2, xs + p))
            k.I("v_add_f32 v%d, v%d, v%d" % (a, a, t1))
            k.I("v_add_f32 v%d, v%d, v%d" % (b, b, t2))
            k.I("v_cvt_pk_bf16_f32 v%d, v%d, v%d" % (r + 8 + p, a, b))
        k.VM("global_store_dwordx2 v7, v[%d:%d], s[40:41] offset:%d" % (r + 8, r + 9, 16 * qq))
    k.I("K2_exit:")
    k.I("s_endpgm")
    return k
```

```python
from asmlib import *
from gen_k1 import *

K3_WGS = 224
ST = 114688
K3_LDS = ST + 2048
GK1 = -2.0 * 0.7978845608028654 * L2E
GK2 = GK1 * 0.044715


def gen_k3():
    k = Kern("k3_gemm1_kernel")
    k.I("s_cmp_ge_u32 s2, %d" % K3_WGS)
    k.I("s_cbranch_scc1 K3_exit")
    k.I("s_load_dwordx2 s[40:41], s[0:1], 112")
    k.I("s_load_dwordx2 s[34:35], s[0:1], 72")
    k.I("v_lshrrev_b32 v1, 6, v0")
    k.I("v_and_b32 v2, 63, v0")
    k.I("v_readfirstlane_b32 s4, v1")
    k.I("s_and_b32 s5, s2, 7")
    k.I("s_lshr_b32 s6, s2, 3")
    k.I("s_cmp_ge_u32 s6, 14")
    k.I("s_cselect_b32 s7, 1, 0")
    k.I("s_lshl_b32 s5, s5, 1")
    k.I("s_add_u32 s5, s5, s7")
    k.I("s_mul_i32 s7, s7, 14")
    k.I("s_sub_u32 s6, s6, s7")
    k.I("s_and_b32 s7, s4, 1")
    k.I("s_lshr_b32 s8, s4, 1")
    k.I("s_lshl_b32 s9, s6, 2")
    k.I("s_lshl_b32 s10, s7, 1")
    k.I("s_add_u32 s9, s9, s10")
    k.I("s_lshl_b32 s10, s8, 1")
    k.I("s_add_u32 s10, s10, s7")
    k.I("s_xor_b32 s11, s10, 1")
    for i in range(7):
        k.I("s_mov_b32 s%d, %d" % (48 + i, 4096 * i))
    k.I("v_lshrrev_b32 v3, 4, v2")
    k.I("v_bfe_u32 v4, v2, 2, 2")
    k.I("v_xor_b32 v4, v4, v3")
    k.I("v_lshlrev_b32 v5, 12, v3")
    k.I("v_lshl_add_u32 v5, v4, 6, v5")
    k.I("v_and_b32 v4, 3, v2")
    k.I("v_lshl_add_u32 v5, v4, 4, v5")
    k.I("s_lshl_b32 s12, s5, 8")
    k.I("s_add_u32 s12, s12, %d" % HT_OFF)
    k.I("v_add_u32 v5, s12, v5")
    k.I("s_mul_i32 s12, s9, 28672")
    k.I("s_add_u32 s12, s12, %d" % W1F_OFF)
    k.I("v_lshlrev_b32 v6, 4, v2")
    k.I("v_add_u32 v6, s12, v6")
    k.I("v_add_u32 v7, 28672, v6")
    k.I("s_waitcnt lgkmcnt(0)")
    k.I("s_mov_b32 s44, s40")
    k.I("s_and_b32 s45, s41, 0xffff")
    k.I("s_mov_b32 s46, %d" % WS_USED)
    k.I("s_mov_b32 s47, 0x00020000")
    k.I("s_lshl_b32 s13, s4, 10")
    k.I("s_lshl_b32 s14, s4, 14")
    ACC, AR, BR, CSR, B1R = 16, 80, 144, 192, 224

    def dma(i):
        k.I("s_mov_b32 m0, s13")
        k.VM("buffer_load_dwordx4 v5, s[44:47], s14 offen lds", ("dma", i))
        k.I("s_add_u32 s13, s13, 4096")
        k.I("s_add_u32 s14, s14, 65536")

    def loadA(ks):
        r = AR + 8 * (ks % 8)
        so = "s%d" % (48 + ks // 4)
        k.VM("buffer_load_dwordx4 v[%d:%d], v6, s[44:47], %s offen offset:%d" % (r, r + 3, so, 1024 * (ks % 4)))
        k.VM("buffer_load_dwordx4 v[%d:%d], v7, s[44:47], %s offen offset:%d" % (r + 4, r + 7, so, 1024 * (ks % 4)), ("A", ks))

    for i in range(7):
        dma(i)
    for ks in range(8):
        loadA(ks)
    for i in range(7, 28):
        dma(i)
    k.I("v_lshrrev_b32 v8, 5, v2")
    k.I("s_lshl_b32 s12, s9, 7")
    k.I("s_add_u32 s12, s12, %d" % CS_OFF)
    k.I("v_lshl_add_u32 v9, v8, 4, s12")
    k.I("s_lshl_b32 s12, s9, 6")
    k.I("v_lshl_add_u32 v10, v8, 3, s12")
    for a in range(2):
        for q in range(4):
            r = CSR + 16 * a + 4 * q
            k.VM("buffer_load_dwordx4 v[%d:%d], v9, s[44:47], 0 offen offset:%d" % (r, r + 3, 128 * a + 32 * q))
    for a in range(2):
        for q in range(4):
            r = B1R + 8 * a + 2 * q
            k.VM("global_load_dwordx2 v[%d:%d], v10, s[34:35] offset:%d" % (r, r + 1, 64 * a + 16 * q), "consts")
    k.I("v_lshrrev_b32 v3, 5, v2")
    k.I("v_bfe_u32 v4, v2, 2, 2")
    k.I("v_lshl_add_u32 v11, v3, 2, v4")
    k.I("v_lshlrev_b32 v11, 8, v11")
    k.I("v_bfe_u32 v12, v2, 4, 1")
    k.I("v_lshl_add_u32 v11, v12, 5, v11")
    k.I("v_and_b32 v12, 3, v2")
    k.I("v_lshl_add_u32 v11, v12, 3, v11")
    k.I("v_xor_b32 v12, s10, v4")
    k.I("v_lshl_add_u32 v12, v12, 6, v11")
    k.I("v_xor_b32 v13, s11, v4")
    k.I("v_lshl_add_u32 v13, v13, 6, v11")
    k.I("v_add_u32 v14, 57344, v12")
    k.I("v_add_u32 v15, 57344, v13")
    k.I("v_mov_b32 v240, 0")
    k.I("v_mov_b32 v241, 0")
    k.I("v_mov_b32 v242, 0x3f803f80")

    def readB(ks):
        r = BR + 16 * (ks % 3)
        a0, a1 = (12, 13) if ks < 14 else (14, 15)
        off = (ks % 14) * 4096
        k.LG("ds_read_b64_tr_b16 v[%d:%d], v%d offset:%d" % (r, r + 1, a0, off))
        k.LG("ds_read_b64_tr_b16 v[%d:%d], v%d offset:%d" % (r + 2, r + 3, a0, off + 2048))
        k.LG("ds_read_b64_tr_b16 v[%d:%d], v%d offset:%d" % (r + 4, r + 5, a1, off))
        k.LG("ds_read_b64_tr_b16 v[%d:%d], v%d offset:%d" % (r + 6, r + 7, a1, off + 2048), ("B", ks))

    for ks in range(28):
        if ks % 7 == 0:
            k.wait_vm(("dma", ks + 6))
            k.I("s_barrier")
            readB(ks)
            readB(ks + 1)
        elif ks % 7 < 6:
            readB(ks + 1)
        k.wait_lg(("B", ks))
        k.wait_vm(("A", ks))
        ar = AR + 8 * (ks % 8)
        br = BR + 16 * (ks % 3)
        for a in range(2):
            for b in range(2):
                c = ACC + 16 * (2 * a + b)
                cs = "0" if ks == 0 else "v[%d:%d]" % (c, c + 15)
                k.I("v_mfma_f32_32x32x16_bf16 v[%d:%d], v[%d:%d], v[%d:%d], %s" %
                    (c, c + 15, ar + 4 * a, ar + 4 * a + 3, br + 4 * b, br + 4 * b + 3, cs))
                i = 2 * a + b
                k.I("v_dot2_f32_bf16 v240, v%d, v242, v240" % (br + i))
                k.I("v_dot2_f32_bf16 v241, v%d, v%d, v241" % (br + i, br + i))
        if ks + 8 < 28:
            loadA(ks + 8)
    k.I("s_lshl_b32 s12, s10, 9")
    k.I("v_lshl_add_u32 v3, v2, 3, s12")
    k.I("v_add_u32 v3, %d, v3" % ST)
    k.LG("ds_write_b64 v3, v[240:241]")
    k.I("v_and_b32 v4, 31, v2")
    k.I("v_lshl_add_u32 v4, v4, 3, s12")
    k.I("v_xor_b32 v5, 512, v4")
    k.I("s_waitcnt lgkmcnt(0)")
    k.I("s_barrier")
    k.I("v_add_u32 v4, %d, v4" % ST)
    k.I("v_add_u32 v5, %d, v5" % ST)
    k.LG("ds_read2_b64 v[240:243], v4 offset0:0 offset1:32")
    k.LG("ds_read2_b64 v[244:247], v5 offset0:0 offset1:32")
    k.I("s_waitcnt lgkmcnt(0)")
    NM, RI = 248, 250
    for b in range(2):
        s = 240 + 4 * b
        k.I("v_add_f32 v%d, v%d, v%d" % (s, s, s + 2))
        k.I("v_add_f32 v%d, v%d, v%d" % (s + 1, s + 1, s + 3))
        k.I("v_mul_f32 v%d, %s, v%d" % (s, f32hex(1.0 / 448), s))
        k.I("v_mul_f32 v%d, %s, v%d" % (s + 1, f32hex(1.0 / 448), s + 1))
        k.I("v_fma_f32 v%d, -v%d, v%d, v%d" % (s + 1, s, s, s + 1))
        k.I("v_max_f32 v%d, 0, v%d" % (s + 1, s + 1))
        k.I("v_cvt_pk_bf16_f32 v%d, v%d, -v%d" % (s + 2, s + 1, s))
        k.I("v_and_b32 v%d, 0xffff0000, v%d" % (NM + b, s + 2))
        k.I("v_lshlrev_b32 v%d, 16, v%d" % (s + 2, s + 2))
        k.I("v_add_f32 v%d, %s, v%d" % (s + 2, f32hex(1e-5), s + 2))
        k.I("v_cvt_pk_bf16_f32 v%d, v%d, v%d" % (s + 2, s + 2, s + 2))
        k.I("v_lshlrev_b32 v%d, 16, v%d" % (s + 2, s + 2))
        k.I("v_sqrt_f32 v%d, v%d" % (s + 2, s + 2))
        k.I("v_cvt_pk_bf16_f32 v%d, v%d, v%d" % (s + 2, s + 2, s + 2))
        k.I("v_lshlrev_b32 v%d, 16, v%d" % (s + 2, s + 2))
        k.I("v_rcp_f32 v%d, v%d" % (RI + b, s + 2))
    k.wait_vm("consts")
    k.I("s_lshl_b32 s12, s5, 2")
    k.I("s_add_u32 s13, s12, s10")
    k.I("s_add_u32 s14, s12, s11")
    k.I("s_mul_i32 s13, s13, 112")
    k.I("s_mul_i32 s14, s14, 112")
    k.I("s_lshl_b32 s12, s9, 1")
    k.I("s_add_u32 s13, s13, s12")
    k.I("s_add_u32 s14, s14, s12")
    k.I("s_lshl_b32 s13, s13, 10")
    k.I("s_lshl_b32 s14, s14, 10")
    k.I("s_add_u32 s13, s13, %d" % HF_OFF)
    k.I("s_add_u32 s14, s14, %d" % HF_OFF)
    k.I("v_lshlrev_b32 v3, 4, v2")
    k.I("v_add_u32 v4, s13, v3")
    k.I("v_add_u32 v5, s14, v3")
    k.I("s_mov_b32 s16, %s" % f32hex(GK1))
    k.I("s_mov_b32 s17, %s" % f32hex(GK2))
    B1F = 80
    T = 100
    OUT = 120
    for a in range(2):
        for q in range(4):
            for p in range(2):
                k.I("v_lshlrev_b32 v%d, 16, v%d" % (B1F + 4 * q + 2 * p, B1R + 8 * a + 2 * q + p))
                k.I("v_and_b32 v%d, 0xffff0000, v%d" % (B1F + 4 * q + 2 * p + 1, B1R + 8 * a + 2 * q + p))
        for b in range(2):
            c = ACC + 16 * (2 * a + b)
            for j in range(2):
                o = OUT + 4 * ((2 * b + j) % 4)
                rs = range(8 * j, 8 * j + 8)
                for r in rs:
                    k.I("v_fma_f32 v%d, v%d, v%d, v%d" % (c + r, NM + b, CSR + 16 * a + r, c + r))
                for r in rs:
                    k.I("v_mul_f32 v%d, v%d, v%d" % (c + r, c + r, RI + b))
                for r in rs[::2]:
                    k.I("v_cvt_pk_bf16_f32 v%d, v%d, v%d" % (T + (r % 8) // 2, c + r, c + r + 1))
                for r in rs[::2]:
                    k.I("v_lshlrev_b32 v%d, 16, v%d" % (c + r, T + (r % 8) // 2))
                    k.I("v_and_b32 v%d, 0xffff0000, v%d" % (c + r + 1, T + (r % 8) // 2))
                for r in rs:
                    k.I("v_add_f32 v%d, v%d, v%d" % (c + r, c + r, B1F + r))
                for r in rs[::2]:
                    k.I("v_cvt_pk_bf16_f32 v%d, v%d, v%d" % (T + (r % 8) // 2, c + r, c + r + 1))
                for r in rs[::2]:
                    k.I("v_lshlrev_b32 v%d, 16, v%d" % (c + r, T + (r % 8) // 2))
                    k.I("v_and_b32 v%d, 0xffff0000, v%d" % (c + r + 1, T + (r % 8) // 2))
                for r in rs:
                    k.I("v_mul_f32 v%d, v%d, v%d" % (T + r % 8, c + r, c + r))
                for r in rs:
                    k.I("v_mov_b32 v%d, s16" % (T + 8 + r % 8))
                for r in rs:
                    k.I("v_fma_f32 v%d, v%d, s17, v%d" % (T + r % 8, T + r % 8, T + 8 + r % 8))
                for r in rs:
                    k.I("v_mul_f32 v%d, v%d, v%d" % (T + r % 8, T + r % 8, c + r))
                for r in rs:
                    k.I("v_exp_f32 v%d, v%d" % (T + r % 8, T + r % 8))
                for r in rs:
                    k.I("v_add_f32 v%d, 1.0, v%d" % (T + r % 8, T + r % 8))
                for r in rs:
                    k.I("v_rcp_f32 v%d, v%d" % (T + r % 8, T + r % 8))
                for r in rs:
                    k.I("v_mul_f32 v%d, v%d, v%d" % (c + r, c + r, T + r % 8))
                for r in rs[::2]:
                    k.I("v_cvt_pk_bf16_f32 v%d, v%d, v%d" % (o + (r % 8) // 2, c + r, c + r + 1))
                k.VM("global_store_dwordx4 v%d, v[%d:%d], s[40:41] offset:%d" % (4 + b, o, o + 3, 2048 * a + 1024 * j))
    k.I("K3_exit:")
    k.I("s_endpgm")
    return k
```

```python
from asmlib import *
from gen_k1 import *

K4_WGS = 224
K4_LDS = 65536


def gen_k4():
    k = Kern("k4_gemm2_kernel")
    k.I("s_cmp_ge_u32 s2, %d" % K4_WGS)
    k.I("s_cbranch_scc1 K4_exit")
    k.I("s_load_dwordx2 s[40:41], s[0:1], 112")
    k.I("s_load_dwordx4 s[36:39], s[0:1], 88")
    k.I("v_lshrrev_b32 v1, 6, v0")
    k.I("v_and_b32 v2, 63, v0")
    k.I("v_readfirstlane_b32 s4, v1")
    k.I("s_and_b32 s5, s2, 7")
    k.I("s_lshr_b32 s6, s2, 3")
    k.I("s_mul_i32 s7, s6, 37")
    k.I("s_lshr_b32 s7, s7, 8")
    k.I("s_lshl_b32 s5, s5, 2")
    k.I("s_add_u32 s5, s5, s7")
    k.I("s_mul_i32 s7, s7, 7")
    k.I("s_sub_u32 s6, s6, s7")
    for i in range(7):
        k.I("s_mov_b32 s%d, %d" % (48 + i, 4096 * i))
    k.I("s_mul_i32 s8, s6, 224")
    k.I("s_mul_i32 s9, s4, 28")
    k.I("s_add_u32 s8, s8, s9")
    k.I("s_lshl_b32 s8, s8, 10")
    k.I("s_add_u32 s8, s8, %d" % W2F_OFF)
    k.I("s_mul_i32 s10, s5, 224")
    k.I("s_add_u32 s10, s10, s9")
    k.I("s_lshl_b32 s10, s10, 10")
    k.I("s_add_u32 s10, s10, %d" % HF_OFF)
    k.I("v_lshlrev_b32 v3, 4, v2")
    k.I("v_add_u32 v4, s8, v3")
    k.I("v_add_u32 v5, %d, v4" % (112 * 1024))
    k.I("v_add_u32 v6, s10, v3")
    k.I("v_add_u32 v7, %d, v6" % (112 * 1024))
    k.I("s_waitcnt lgkmcnt(0)")
    k.I("s_mov_b32 s44, s40")
    k.I("s_and_b32 s45, s41, 0xffff")
    k.I("s_mov_b32 s46, %d" % WS_USED)
    k.I("s_mov_b32 s47, 0x00020000")
    ACC, RING, HR, B2R = 16, 80, 208, 224
    DEPTH = 8

    def load(ks):
        r = RING + 16 * (ks % DEPTH)
        so = "s%d" % (48 + ks // 4)
        for i, va in enumerate((4, 5, 6, 7)):
            k.VM("buffer_load_dwordx4 v[%d:%d], v%d, s[44:47], %s offen offset:%d" %
                 (r + 4 * i, r + 4 * i + 3, va, so, 1024 * (ks % 4)), ("L", ks) if i == 3 else None)

    for ks in range(DEPTH):
        load(ks)
    k.I("s_lshr_b32 s11, s4, 1")
    k.I("s_lshl_b32 s11, s11, 5")
    k.I("s_lshl_b32 s12, s6, 6")
    k.I("s_add_u32 s11, s11, s12")
    k.I("s_and_b32 s12, s4, 1")
    k.I("s_lshl_b32 s12, s12, 5")
    k.I("s_lshl_b32 s13, s5, 6")
    k.I("s_add_u32 s12, s12, s13")
    k.I("v_lshrrev_b32 v8, 5, v2")
    k.I("v_lshl_add_u32 v9, v8, 2, s11")
    k.I("v_and_b32 v10, 31, v2")
    k.I("v_add_u32 v10, s12, v10")
    k.I("v_lshlrev_b32 v11, 12, v9")
    k.I("v_lshl_add_u32 v11, v10, 1, v11")
    k.I("v_add_u32 v11, %d, v11" % HT_OFF)
    k.I("v_lshlrev_b32 v12, 1, v9")
    k.I("v_mul_u32_u24 v13, 896, v10")
    k.I("v_lshl_add_u32 v13, v9, 1, v13")
    for q in range(4):
        for i in range(4):
            k.I("v_add_u32 v14, %d, v11" % ((8 * q + i) * 4096))
            k.VM("global_load_ushort v%d, v14, s[40:41]" % (HR + 4 * q + i))
    for q in range(4):
        k.VM("global_load_dwordx2 v[%d:%d], v12, s[36:37] offset:%d" % (B2R + 2 * q, B2R + 2 * q + 1, 16 * q), "ep")
    for ks in range(28):
        k.wait_vm(("L", ks))
        r = RING + 16 * (ks % DEPTH)
        for a in range(2):
            for b in range(2):
                c = ACC + 16 * (2 * a + b)
                cs = "0" if ks == 0 else "v[%d:%d]" % (c, c + 15)
                k.I("v_mfma_f32_32x32x16_bf16 v[%d:%d], v[%d:%d], v[%d:%d], %s" %
                    (c, c + 15, r + 4 * a, r + 4 * a + 3, r + 8 + 4 * b, r + 8 + 4 * b + 3, cs))
        if ks + DEPTH < 28:
            load(ks + DEPTH)
    k.I("s_lshl_b32 s14, s4, 14")
    k.I("v_add_u32 v14, s14, v3")
    k.I("s_lshl_b32 s15, s4, 12")
    k.I("v_add_u32 v15, s15, v3")
    for t in range(4):
        for q in range(4):
            a = ACC + 16 * t + 4 * q
            k.LG("ds_write_b128 v14, v[%d:%d] offset:%d" % (a, a + 3, (4 * t + q) * 1024))
    k.I("s_waitcnt lgkmcnt(0)")
    k.I("s_barrier")
    R = 80
    for q in range(4):
        for w in range(4):
            r = R + 16 * q + 4 * w
            k.LG("ds_read_b128 v[%d:%d], v15 offset:%d" % (r, r + 3, w * 16384 + q * 1024))
    k.I("s_waitcnt lgkmcnt(0)")
    k.wait_vm("ep")
    for q in range(4):
        r = R + 16 * q
        for i in range(4):
            k.I("v_add_f32 v%d, v%d, v%d" % (r + i, r + i, r + 4 + i))
            k.I("v_add_f32 v%d, v%d, v%d" % (r + 8 + i, r + 8 + i, r + 12 + i))
        for i in range(4):
            k.I("v_add_f32 v%d, v%d, v%d" % (r + i, r + i, r + 8 + i))
        for p in range(2):
            a, b = r + 2 * p, r + 2 * p + 1
            t0, t1, t2 = r + 4, r + 5, r + 6
            k.I("v_cvt_pk_bf16_f32 v%d, v%d, v%d" % (t0, a, b))
            k.I("v_lshlrev_b32 v%d, 16, v%d" % (a, t0))
            k.I("v_and_b32 v%d, 0xffff0000, v%d" % (b, t0))
            k.I("v_lshlrev_b32 v%d, 16, v%d" % (t1, B2R + 2 * q + p))
            k.I("v_and_b32 v%d, 0xffff0000, v%d" % (t2, B2R + 2 * q + p))
            k.I("v_add_f32 v%d, v%d, v%d" % (a, a, t1))
            k.I("v_add_f32 v%d, v%d, v%d" % (b, b, t2))
            k.I("v_cvt_pk_bf16_f32 v%d, v%d, v%d" % (t0, a, b))
            k.I("v_lshlrev_b32 v%d, 16, v%d" % (a, t0))
            k.I("v_and_b32 v%d, 0xffff0000, v%d" % (b, t0))
            k.I("v_lshlrev_b32 v%d, 16, v%d" % (t1, HR + 4 * q + 2 * p))
            k.I("v_lshlrev_b32 v%d, 16, v%d" % (t2, HR + 4 * q + 2 * p + 1))
            k.I("v_add_f32 v%d, v%d, v%d" % (a, a, t1))
            k.I("v_add_f32 v%d, v%d, v%d" % (b, b, t2))
            k.I("v_cvt_pk_bf16_f32 v%d, v%d, v%d" % (r + 8 + p, a, b))
        k.VM("global_store_dwordx2 v13, v[%d:%d], s[38:39] offset:%d" % (r + 8, r + 9, 16 * q))
    k.I("K4_exit:")
    k.I("s_endpgm")
    return k
```

```python
import re, sys, os
from asmlib import *
import gen_k1, gen_k2, gen_k3, gen_k4

NAME = "sequential_preLN__ssm_conv_s4d__dense_activation_gelu__prompt"
ref = open("cdna_kernels/%s.s.ref" % NAME).read().split("\n")
hdr = [l for l in ref if l.startswith(";") and "@launch" not in l and "Override launch" not in l and "grid=ceil" not in l]

def maxreg(text, c):
    m = 0
    for a in re.finditer(r"\b%s(\d+)\b" % c, text):
        m = max(m, int(a.group(1)))
    for a in re.finditer(r"\b%s\[(\d+):(\d+)\]" % c, text):
        m = max(m, int(a.group(2)))
    return m

kerns = [(gen_k1.gen_k1(), gen_k1.K1_WGS, gen_k1.K1_LDS),
         (gen_k2.gen_k2(), gen_k2.K2_WGS, gen_k2.K2_LDS),
         (gen_k3.gen_k3(), gen_k3.K3_WGS, gen_k3.K3_LDS),
         (gen_k4.gen_k4(), gen_k4.K4_WGS, gen_k4.K4_LDS)]
out = list(hdr)
for k, g, lds in kerns:
    blk = 512 if k.name.startswith("k3_") else 256
    out.append("; @launch kernel=%s grid=(%d,1,1) block=(%d,1,1) lds=%d" % (k.name, g, blk, lds))
out.append('.amdgcn_target "amdgcn-amd-amdhsa--gfx950"')
out.append(".text")
descs = []
for k, g, lds in kerns:
    body = k.text()
    out += [".globl %s" % k.name, ".p2align 8", ".type %s,@function" % k.name, "%s:" % k.name, body]
    nv = maxreg(body, "v") + 1
    nv = (nv + 7) // 8 * 8
    ns = 96
    descs += [".p2align 6", ".amdhsa_kernel %s" % k.name,
              "  .amdhsa_next_free_vgpr %d" % nv,
              "  .amdhsa_next_free_sgpr %d" % ns,
              "  .amdhsa_accum_offset %d" % nv,
              "  .amdhsa_group_segment_fixed_size 0",
              "  .amdhsa_kernarg_size 120",
              "  .amdhsa_user_sgpr_count 2",
              "  .amdhsa_user_sgpr_kernarg_segment_ptr 1",
              "  .amdhsa_system_sgpr_workgroup_id_x 1",
              ".end_amdhsa_kernel"]
    print(k.name, "vgpr", nv, "lines", body.count("\n"))
out.append('.section .rodata,"a"')
out += descs
open(os.environ.get("OUT", "cdna_kernels/%s.s" % NAME), "w").write("\n".join(out) + "\n")
```

```python
import re

TRANS = ("v_exp_f32", "v_log_f32", "v_rcp_f32", "v_rsq_f32", "v_sqrt_f32", "v_sin_f32", "v_cos_f32",
         "v_rcp_iflag_f32")


def _regs(tok):
    tok = tok.strip()
    tok = tok.lstrip("-")
    m = re.match(r"^abs\((.*)\)$", tok)
    if m:
        tok = m.group(1)
    m = re.match(r"^\|(.*)\|$", tok)
    if m:
        tok = m.group(1)
    m = re.match(r"^([vsa])(\d+)$", tok)
    if m:
        return [(m.group(1), int(m.group(2)))]
    m = re.match(r"^([vsa])\[(\d+):(\d+)\]$", tok)
    if m:
        return [(m.group(1), i) for i in range(int(m.group(2)), int(m.group(3)) + 1)]
    if tok == "vcc":
        return [("s", 106), ("s", 107)]
    if tok == "vcc_lo":
        return [("s", 106)]
    if tok == "vcc_hi":
        return [("s", 107)]
    if tok == "exec":
        return [("s", 126), ("s", 127)]
    if tok == "m0":
        return [("s", 124)]
    return []


class Ins:
    def __init__(self, text):
        self.text = text
        t = text.split(";")[0].strip()
        self.is_label = t.endswith(":")
        self.op = ""
        self.rd, self.wr = set(), set()
        self.dpp = False
        self.kind = "other"
        if self.is_label or not t or t.startswith("."):
            self.kind = "label" if self.is_label else "none"
            return
        parts = t.split(None, 1)
        op = parts[0]
        self.op = op
        rest = parts[1] if len(parts) > 1 else ""
        rest = re.sub(r"\b(op_sel|op_sel_hi|neg_lo|neg_hi):\[[^\]]*\]", "", rest).strip()
        ops = [o.strip() for o in rest.split(",")] if rest else []
        mods = ""
        if ops:
            last = ops[-1].split(None, 1)
            if len(last) > 1:
                ops[-1] = last[0]
                mods = last[1]
        self.ops = ops
        self.mods = mods
        self.dpp = ("row_" in mods or "quad_perm" in mods or "wave_" in mods or "_dpp" in op)
        R = [_regs(o) for o in ops]
        base = op.replace("_e32", "").replace("_e64", "").replace("_dpp", "")
        self.base = base
        flat = lambda L: set(x for l in L for x in l)
        if op.startswith("v_mfma"):
            self.kind = "mfma"
            self.wr = flat(R[:1])
            self.rd = flat(R[1:])
            self.srcC = flat(R[3:4])
            self.srcAB = flat(R[1:3])
            self.passes = 8 if "32x32" in op else 4
        elif op.startswith("v_cmp"):
            self.kind = "valu"
            self.wr = flat(R[:1])
            self.rd = flat(R[1:])
        elif op.startswith("v_permlane") and "swap" in op:
            self.kind = "valu"
            self.wr = flat(R[:2])
            self.rd = flat(R[:2])
            self.permlane = True
        elif op.startswith("v_"):
            self.kind = "valu"
            self.wr = flat(R[:1])
            self.rd = flat(R[1:])
            if base in ("v_fmac_f32", "v_dot2c_f32_bf16", "v_writelane_b32"):
                self.rd |= self.wr
            if base in ("v_add_co_u32", "v_addc_co_u32", "v_sub_co_u32", "v_div_scale_f32"):
                self.wr |= flat(R[1:2])
                self.rd = flat(R[2:])
            if base == "v_cndmask_b32" and len(ops) == 3:
                self.rd |= {("s", 106), ("s", 107)}
            if self.dpp and "bound_ctrl" not in mods:
                self.rd |= self.wr
        elif op.startswith("s_"):
            self.kind = "salu"
            if op.startswith(("s_cmp", "s_cbranch", "s_branch", "s_waitcnt", "s_nop", "s_barrier", "s_endpgm",
                              "s_setprio", "s_sleep")):
                self.rd = flat(R)
            elif op.startswith("s_load") or op.startswith("s_buffer_load"):
                self.kind = "smem"
                self.wr = flat(R[:1])
                self.rd = flat(R[1:])
            else:
                self.wr = flat(R[:1])
                self.rd = flat(R[1:])
                if "saveexec" in op:
                    self.wr |= {("s", 126), ("s", 127)}
        elif op.startswith(("buffer_", "global_", "flat_")):
            self.kind = "vmem"
            if "store" in op or "atomic" in op:
                self.rd = flat(R)
                self.is_store = True
                self.wide = ("x3" in op or "x4" in op)
                if op.startswith("buffer_"):
                    self.data = flat(R[:1])
                else:
                    self.data = flat(R[1:2])
            elif " lds" in (" " + mods):
                self.rd = flat(R) | {("s", 124)}
                self.ldsdma = True
            else:
                self.wr = flat(R[:1])
                self.rd = flat(R[1:])
                if "d16" in op:
                    self.rd |= self.wr
        elif op.startswith("ds_"):
            self.kind = "ds"
            if op.startswith(("ds_write", "ds_add")):
                self.rd = flat(R)
            else:
                self.wr = flat(R[:1])
                self.rd = flat(R[1:])

    def states(self):
        if self.op == "s_nop":
            return int(self.ops[0]) + 1
        return 1


def pad_hazards(lines):
    out = []
    for text in lines:
        ins = Ins(text)
        if ins.kind in ("label", "none"):
            out.append(ins)
            continue
        need = 0
        dist = 0
        for p in reversed(out):
            if p.kind in ("label", "none"):
                continue
            if dist >= 24:
                break
            req = 0
            if p.kind == "valu":
                wv = set(x for x in p.wr if x[0] in "va")
                ws = set(x for x in p.wr if x[0] == "s")
                if ins.kind == "mfma" and wv & ins.rd:
                    req = max(req, 2)
                if ins.kind == "valu":
                    if p.base in TRANS and ins.base not in TRANS and (wv & (ins.rd | ins.wr)):
                        req = max(req, 1)
                    if p.base in TRANS and (wv & ins.rd):
                        req = max(req, 1)
                    if ins.dpp and wv & ins.rd:
                        req = max(req, 2)
                    if getattr(ins, "permlane", False) and wv & ins.rd:
                        req = max(req, 2)
                    if ins.base in ("v_readlane_b32", "v_readfirstlane_b32") and wv & ins.rd:
                        req = max(req, 1)
                    if ws & ins.rd:
                        req = max(req, 4 if ins.base in ("v_readlane_b32", "v_writelane_b32") else 2)
                if ins.kind == "vmem" and ws & ins.rd:
                    req = max(req, 5)
                if ins.kind in ("salu", "smem") and ws & ins.rd:
                    req = max(req, 1)
            elif p.kind == "mfma":
                n = 12 if p.passes == 8 else 8
                if ins.kind == "mfma":
                    if p.wr & ins.srcAB:
                        req = max(req, n)
                    if p.wr & ins.srcC and not (p.wr == ins.srcC and p.passes == ins.passes):
                        req = max(req, 10 if p.passes == 8 else 6)
                else:
                    if p.wr & (ins.rd | ins.wr):
                        req = max(req, n)
                    if ins.kind == "valu" and p.srcC & ins.wr:
                        req = max(req, 7 if p.passes == 8 else 3)
            elif p.kind == "salu":
                if ("s", 124) in p.wr and getattr(ins, "ldsdma", False):
                    req = max(req, 1)
            elif p.kind == "vmem":
                if getattr(p, "is_store", False) and getattr(p, "wide", False) and (p.data & ins.wr):
                    req = max(req, 2)
            if req > dist:
                need = max(need, req - dist)
            dist += p.states()
        while need > 0:
            k = min(need, 16)
            out.append(Ins("s_nop %d" % (k - 1)))
            need -= k
        out.append(ins)
    return [i.text for i in out]


def schedule(lines, lat_valu=3, lat_trans=5, lat_mfma=5):
    ins = [Ins(l) for l in lines]
    n = len(ins)
    preds = [dict() for _ in range(n)]
    lastw, readers = {}, {}
    lastds = None
    for i, x in enumerate(ins):
        assert x.kind in ("valu", "mfma", "ds"), x.text
        def lat(p):
            q = ins[p]
            if q.kind == "mfma":
                return lat_mfma if x.kind == "mfma" else (q.passes + 3)
            if q.kind == "ds":
                return 16
            return lat_trans if q.base in TRANS else lat_valu
        for r in x.rd:
            if r in lastw:
                p = lastw[r]
                preds[i][p] = max(preds[i].get(p, 0), lat(p))
        for r in x.wr:
            if r in lastw:
                p = lastw[r]
                preds[i][p] = max(preds[i].get(p, 0), 1)
            for p in readers.get(r, ()):
                if p != i:
                    preds[i][p] = max(preds[i].get(p, 0), 1)
        if x.kind == "ds":
            if lastds is not None:
                preds[i][lastds] = max(preds[i].get(lastds, 0), 1)
            lastds = i
        for r in x.rd:
            readers.setdefault(r, []).append(i)
        for r in x.wr:
            lastw[r] = i
            readers[r] = [i] if r in x.rd else []
    succs = [[] for _ in range(n)]
    for i in range(n):
        for p, l in preds[i].items():
            succs[p].append((i, l))
    prio = [0] * n
    for i in reversed(range(n)):
        prio[i] = max([prio[j] + l for j, l in succs[i]] + [0])
    npred = [len(preds[i]) for i in range(n)]
    ready_t = [0] * n
    avail = [i for i in range(n) if npred[i] == 0]
    order = []
    t = 0
    while avail:
        cand = [i for i in avail if ready_t[i] <= t]
        if cand:
            i = max(cand, key=lambda j: (prio[j], -j))
        else:
            i = min(avail, key=lambda j: (ready_t[j], -prio[j], j))
            t = ready_t[i]
        avail.remove(i)
        order.append(i)
        for j, l in succs[i]:
            ready_t[j] = max(ready_t[j], t + l)
            npred[j] -= 1
            if npred[j] == 0:
                avail.append(j)
        t += 1
    assert len(order) == n
    return [lines[i] for i in order]


class Kern:
    def __init__(self, name):
        self.name = name
        self.L = []
        self.vm_issued = 0
        self.vm_tags = {}
        self.lg_issued = 0
        self.lg_tags = {}

    def I(self, s):
        for line in s.strip("\n").split("\n"):
            line = line.strip()
            if line:
                self.L.append(line)

    def VM(self, s, tag=None):
        import os
        if "store" in s.split()[0] and self.name[:2] in os.environ.get("STK", "k1,k2,k3,k4"):
            s = s + " " + os.environ.get("STMOD_" + self.name[:2], os.environ.get("STMOD", "sc0 sc1"))
        self.I(s)
        self.vm_issued += 1
        if tag is not None:
            self.vm_tags[tag] = self.vm_issued

    def wait_vm(self, tag):
        n = self.vm_issued - self.vm_tags[tag]
        assert 0 <= n
        self.I("s_waitcnt vmcnt(%d)" % min(n, 63))

    def LG(self, s, tag=None):
        self.I(s)
        self.lg_issued += 1
        if tag is not None:
            self.lg_tags[tag] = self.lg_issued

    def wait_lg(self, tag):
        n = self.lg_issued - self.lg_tags[tag]
        assert 0 <= n
        self.I("s_waitcnt lgkmcnt(%d)" % min(n, 15))

    def sched_begin(self):
        self._sb = len(self.L)

    def sched_end(self, **kw):
        self.L[self._sb:] = schedule(self.L[self._sb:], **kw)

    def stamp(self, i):
        import os
        if os.environ.get("STAMP"):
            self.I("%s s[%d:%d]" % (os.environ.get("STAMP_OP", "s_memtime"), 70 + 2 * i, 71 + 2 * i))

    def stamp_out(self, n, wsreg, wgreg="s2", base=0x1C00000):
        import os
        if not os.environ.get("STAMP"):
            return
        self.I("%s s[%d:%d]" % (os.environ.get("STAMP_OP", "s_memtime"), 70 + 2 * n, 71 + 2 * n))
        self.I("s_waitcnt lgkmcnt(0)")
        self.I("v_lshrrev_b32 v1, 6, v0")
        self.I("v_lshl_add_u32 v1, %s, 3, v1" % wgreg)
        self.I("v_lshlrev_b32 v1, 6, v1")
        self.I("v_add_u32 v1, %d, v1" % base)
        self.I("v_and_b32 v2, 63, v0")
        self.I("v_cmp_eq_u32 vcc, 0, v2")
        self.I("s_and_saveexec_b64 s[12:13], vcc")
        for i in range(n + 1):
            self.I("v_mov_b32 v2, s%d" % (70 + 2 * i))
            self.I("global_store_dword v1, v2, %s offset:%d" % (wsreg, 4 * i))
        self.I("s_mov_b64 exec, s[12:13]")

    def text(self):
        body = pad_hazards(self.L)
        return "\n".join(("" if l.endswith(":") else "    ") + l for l in body)


def vr(a, n=1):
    return "v%d" % a if n == 1 else "v[%d:%d]" % (a, a + n - 1)


def sr(a, n=1):
    return "s%d" % a if n == 1 else "s[%d:%d]" % (a, a + n - 1)


def f32hex(x):
    import struct
    return "0x%08x" % struct.unpack("<I", struct.pack("<f", x))[0]
```

```python
from asmlib import *
import math, os

L_, D_, N_, F_ = 2048, 448, 256, 1792
UREV_OFF = 0
XT_OFF = 0x1D0000
KT_OFF = 0x570000
W1F_OFF = 0x8C0000
W2F_OFF = 0xA50000
CS_OFF = 0xBE0000
HT_OFF = 0xBF0000
HF_OFF = 0xDD0000
WS_USED = 0x14D0000
HP = 4352

UREV_PITCH = 4160
KT_PITCH = 7680

N_LN1, N_KGEN, N_WP, N_CS = 128, 448, 196, 28
K1_WGS = N_LN1 + N_KGEN + N_WP + N_CS
K1_LDS = 24576

L2E = 1.4426950408889634
L2E_HI = 47274.0 / 32768.0
L2E_LO = L2E - L2E_HI
LN2 = math.log(2.0)

P_U, P_LOGA, P_AIM, P_CR, P_CI, P_LOGDT, P_DSK, P_BX, P_W1, P_B1, P_W2, P_B2, P_WS = \
    16, 18, 20, 22, 24, 26, 28, 30, 32, 34, 36, 38, 40


def sp(p):
    return "s[%d:%d]" % (p, p + 1)


def dpp_reduce(k, op, regs):
    for mod in ("row_shr:1 row_mask:0xf bank_mask:0xf bound_ctrl:0",
                "row_shr:2 row_mask:0xf bank_mask:0xf bound_ctrl:0",
                "row_shr:4 row_mask:0xf bank_mask:0xf bound_ctrl:0",
                "row_shr:8 row_mask:0xf bank_mask:0xf bound_ctrl:0",
                "row_bcast:15 row_mask:0xa bank_mask:0xf",
                "row_bcast:31 row_mask:0xc bank_mask:0xf"):
        for r in regs:
            k.I("%s_dpp v%d, v%d, v%d %s" % (op, r, r, r, mod))


def exp_bf16(k, x, out, t0, t1):
    k.I("v_mul_f32 v%d, %s, v%d" % (t0, f32hex(L2E_HI), x))
    k.I("v_mul_f32 v%d, %s, v%d" % (t1, f32hex(L2E_LO * LN2), x))
    k.I("v_exp_f32 v%d, v%d" % (t0, t0))
    k.I("v_fma_f32 v%d, v%d, v%d, v%d" % (t0, t0, t1, t0))
    k.I("v_cvt_pk_bf16_f32 v%d, v%d, v%d" % (t0, t0, t0))
    k.I("v_lshlrev_b32 v%d, 16, v%d" % (out, t0))


def cmul(k, d, a, b, t):
    k.I("v_pk_mul_f32 v[%d:%d], v[%d:%d], v[%d:%d] op_sel_hi:[0,1]" % (t, t + 1, a, a + 1, b, b + 1))
    k.I("v_pk_fma_f32 v[%d:%d], v[%d:%d], v[%d:%d], v[%d:%d] op_sel:[1,1,0] op_sel_hi:[1,0,1] neg_lo:[1,0,0]" %
        (d, d + 1, a, a + 1, b, b + 1, t, t + 1))


def split(k, val, neg_im, hl, t):
    n = "-" if neg_im else ""
    k.I("v_cvt_pk_bf16_f32 v%d, v%d, %sv%d" % (hl, val, n, val + 1))
    k.I("v_lshlrev_b32 v%d, 16, v%d" % (t, hl))
    k.I("v_and_b32 v%d, 0xffff0000, v%d" % (t + 1, hl))
    k.I("v_pk_add_f32 v[%d:%d], v[%d:%d], v[%d:%d] neg_lo:[0,1] neg_hi:[%d,1]" % (t, t + 1, val, val + 1, t, t + 1, 1 if neg_im else 0))
    k.I("v_cvt_pk_bf16_f32 v%d, v%d, v%d" % (hl + 1, t, t + 1))


def role_kgen(k):
    WBS = 4352
    RP = 272
    MX = 4 * WBS
    k.I("K1_kgen:")
    k.stamp(0)
    k.I("s_sub_u32 s2, s2, %d" % N_LN1)
    k.I("s_lshl_b32 s3, s2, 9")
    k.I("v_lshlrev_b32 v1, 1, v0")
    k.I("v_add_u32 v1, s3, v1")
    k.I("s_lshl_b32 s4, s2, 1")
    k.I("v_mov_b32 v7, s4")
    k.I("s_waitcnt lgkmcnt(0)")
    k.VM("global_load_ushort v2, v1, %s" % sp(P_LOGA))
    k.VM("global_load_ushort v3, v1, %s" % sp(P_AIM))
    k.VM("global_load_ushort v4, v1, %s" % sp(P_CR))
    k.VM("global_load_ushort v5, v1, %s" % sp(P_CI))
    k.VM("global_load_ushort v6, v7, %s" % sp(P_LOGDT))
    k.I("v_lshrrev_b32 v46, 6, v0")
    k.I("v_mul_u32_u24 v46, %d, v46" % WBS)
    k.I("v_and_b32 v47, 63, v0")
    k.I("v_lshl_add_u32 v44, v47, 2, v46")
    k.I("v_and_b32 v8, 15, v0")
    k.I("v_mul_u32_u24 v8, %d, v8" % RP)
    k.I("v_lshrrev_b32 v9, 4, v47")
    k.I("v_lshlrev_b32 v9, 4, v9")
    k.I("v_add3_u32 v45, v46, v8, v9")
    k.I("v_lshrrev_b32 v20, 4, v47")
    k.I("v_and_b32 v21, 15, v47")
    k.I("v_lshrrev_b32 v22, 1, v20")
    k.I("v_lshlrev_b32 v22, 7, v22")
    k.I("v_and_b32 v23, 1, v20")
    k.I("v_lshl_add_u32 v22, v23, 2, v22")
    k.I("v_lshl_add_u32 v22, v21, 3, v22")
    k.I("v_lshl_add_u32 v100, v22, 2, v46")
    k.I("v_cmp_gt_u32 vcc, 2, v20")
    k.I("v_lshlrev_b32 v23, 6, v20")
    k.I("v_add_u32 v23, 256, v23")
    k.I("v_lshlrev_b32 v24, 2, v21")
    k.I("v_lshlrev_b32 v25, 1, v21")
    k.I("v_cndmask_b32 v24, v25, v24, vcc")
    k.I("v_add_u32 v23, v23, v24")
    k.I("v_cndmask_b32_e64 v25, 32, 2, vcc")
    k.I("v_add_u32 v24, v23, v25")
    k.I("v_lshl_add_u32 v101, v23, 2, v46")
    k.I("v_lshl_add_u32 v102, v24, 2, v46")
    k.I("v_lshl_add_u32 v25, v20, 6, v21")
    k.I("v_add_u32 v25, 512, v25")
    k.I("v_lshl_add_u32 v103, v25, 2, v46")
    IX = 104
    k.I("v_lshlrev_b32 v8, 3, v0")
    k.I("v_cmp_gt_u32 vcc, 16, v0")
    for i in range(0, 8, 2):
        a = IX + i
        k.I("v_add_u32 v%d, %d, v8" % (a, i))
        k.I("v_add_u32 v%d, %d, v8" % (a + 1, i + 1))
        k.I("v_cvt_f32_u32 v10, v%d" % a)
        k.I("v_cvt_f32_u32 v11, v%d" % (a + 1))
        k.I("v_cvt_pk_bf16_f32 v10, v10, v11")
        k.I("v_and_b32 v11, 0xffff, v10")
        k.I("v_lshrrev_b32 v10, 16, v10")
        k.I("v_subrev_u32 v11, 17024, v11")
        k.I("v_subrev_u32 v10, 17024, v10")
        k.I("v_cndmask_b32 v%d, v11, v%d, vcc" % (a, a))
        k.I("v_cndmask_b32 v%d, v10, v%d, vcc" % (a + 1, a + 1))
    for i in range(8):
        k.I("v_lshlrev_b32 v%d, 2, v%d" % (IX + i, IX + i))
    k.I("s_waitcnt vmcnt(0)")
    k.stamp(1)
    k.sched_begin()
    for r in (2, 3, 4, 5, 6):
        k.I("v_lshlrev_b32 v%d, 16, v%d" % (r, r))
    exp_bf16(k, 6, 6, 8, 9)
    exp_bf16(k, 2, 2, 12, 13)
    k.I("v_mul_f32 v10, v2, v6")
    k.I("v_mul_f32 v11, v3, v6")
    k.I("v_mul_f32 v4, v4, v6")
    k.I("v_mul_f32 v5, v5, v6")
    C0 = 34
    k.I("v_add_f32 v34, v4, v4")
    k.I("v_add_f32 v35, v5, v5")
    k.I("v_add_f32 v1, |v34|, |v35|")
    k.I("v_mul_f32 v10, %s, v10" % f32hex(-L2E))
    k.I("v_mul_f32 v11, %s, v11" % f32hex(1.0 / (2 * math.pi)))
    FE, FVB, GF, ACCR = 48, 64, 80, 2
    FV = lambda j: FVB + 2 * (j - 1)
    EE = lambda e: 20 + 2 * (e - 1)
    E128, E512, E516, E1024, E1536, E2048, E256 = 18, 14, 16, 18, 42, 96, 42
    for (p_, r, ta, tb) in ((1, EE(1), 8, 9), (8, FV(1), 12, 13), (128, E128, 42, 43)):
        k.I("v_mul_f32 v%d, %s, v10" % (ta, f32hex(float(p_))))
        k.I("v_mul_f32 v%d, %s, v11" % (tb, f32hex(float(p_))))
        k.I("v_exp_f32 v%d, v%d" % (ta, ta))
        k.I("v_fract_f32 v%d, v%d" % (tb, tb))
        k.I("v_cos_f32 v%d, v%d" % (r, tb))
        k.I("v_sin_f32 v%d, v%d" % (r + 1, tb))
        k.I("v_mul_f32 v%d, v%d, v%d" % (r, ta, r))
        k.I("v_mul_f32 v%d, v%d, v%d" % (r + 1, ta, r + 1))
    k.sched_end()
    dpp_reduce(k, "v_max_f32", [1])
    k.I("v_readlane_b32 s5, v1, 63")
    k.I("v_frexp_exp_i32_f32 v1, s5")
    k.I("v_mov_b32 v7, 100")
    k.I("v_min_i32 v1, v1, v7")
    k.I("v_mov_b32 v7, -100")
    k.I("v_max_i32 v1, v1, v7")
    k.I("v_sub_u32 v7, 0, v1")
    k.I("v_ldexp_f32 v34, v34, v7")
    k.I("v_ldexp_f32 v35, v35, v7")
    k.I("v_ldexp_f32 v98, 1.0, v1")
    k.I("v_lshrrev_b32 v7, 6, v0")
    k.I("v_lshlrev_b32 v7, 2, v7")
    k.LG("ds_write_b32 v7, v1 offset:%d" % MX)
    k.sched_begin()
    slot = [0]

    def SL():
        slot[0] += 1
        return 112 + 4 * (slot[0] % 4)

    def cm(d, a_, b_):
        cmul(k, d, a_, b_, SL() + 2)

    def row(ldsrow, src, mul, neg):
        sl = SL()
        val = src
        if mul is not None:
            val = sl
            cmul(k, val, src, mul, sl + 2)
        k.I("v_cvt_pk_f16_f32 v%d, v%d, %sv%d" % (sl + 2, val, "-" if neg else "", val + 1))
        k.LG("ds_write_b32 v44, v%d offset:%d" % (sl + 2, ldsrow * RP))

    for V in (FV, EE):
        cm(V(2), V(1), V(1))
        cm(V(3), V(2), V(1))
        cm(V(4), V(2), V(2))
        cm(V(5), V(4), V(1))
        cm(V(6), V(4), V(2))
        cm(V(7), V(4), V(3))
    cm(FV(8), FV(4), FV(4))
    cm(C0 + 2, C0, E128)
    cm(E256, E128, E128)
    cm(C0 + 4, C0, E256)
    cm(C0 + 6, C0 + 2, E256)
    cm(E512, E256, E256)
    cm(E516, E512, EE(4))
    cm(E1024, E512, E512)
    cm(E1536, E1024, E512)
    cm(E2048, E1024, E1024)
    sl = SL()
    k.I("v_mov_b32 v%d, 0x3c00" % (sl + 2))
    k.LG("ds_write_b32 v44, v%d" % (sl + 2))
    for j in range(1, 16):
        if j <= 8:
            row(j, FV(j), None, False)
        else:
            row(j, FV(8), FV(j - 8), False)
    for s_ in range(4):
        k.LG("ds_read_b128 v[%d:%d], v45 offset:%d" % (FE + 4 * s_, FE + 4 * s_ + 3, 64 * s_), "fe")

    def readG(g):
        for s_ in range(4):
            k.LG("ds_read_b128 v[%d:%d], v45 offset:%d" % (GF + 4 * s_, GF + 4 * s_ + 3, 64 * s_), ("g", g))

    def mfmas(g):
        a_ = ACCR + 4 * g
        for s_ in range(4):
            y = FE + 4 * s_
            c = "0" if s_ == 0 else "v[%d:%d]" % (a_, a_ + 3)
            k.I("v_mfma_f32_16x16x32_f16 v[%d:%d], v[%d:%d], v[%d:%d], %s" % (a_, a_ + 3, GF + 4 * s_, GF + 4 * s_ + 3, y, y + 3, c))

    for kk in range(2):
        for e in range(8):
            row(8 * kk + e, C0 + 2 * kk, EE(e) if e else None, True)
    readG(0)
    for kk in range(2):
        for e in range(4):
            row(4 * kk + e, C0 + 4 + 2 * kk, EE(2 * e) if e else None, True)
    k.sched_end()
    k.stamp(2)
    k.wait_lg(("g", 0))
    k.sched_begin()
    mfmas(0)
    for kk in range(4):
        row(8 + 2 * kk, C0 + 2 * kk, E512, True)
        row(8 + 2 * kk + 1, C0 + 2 * kk, E516, True)
    readG(1)
    for kk in range(4):
        row(kk, C0 + 2 * kk, E1024, True)
    for kk in range(4):
        row(4 + kk, C0 + 2 * kk, E1536, True)
    k.sched_end()
    k.wait_lg(("g", 1))
    k.sched_begin()
    mfmas(1)
    row(8, C0, E2048, True)
    readG(2)
    for r in range(4):
        k.I("v_mul_f32 v%d, v98, v%d" % (ACCR + r, ACCR + r))
    k.sched_end()
    k.wait_lg(("g", 2))
    mfmas(2)
    k.stamp(3)
    for r in range(4, 8):
        k.I("v_mul_f32 v%d, v98, v%d" % (ACCR + r, ACCR + r))
    k.LG("ds_write_b128 v100, v[%d:%d]" % (ACCR, ACCR + 3))
    k.LG("ds_write_b64 v101, v[%d:%d]" % (ACCR + 4, ACCR + 5))
    k.LG("ds_write_b64 v102, v[%d:%d]" % (ACCR + 6, ACCR + 7))
    for r in range(8, 12):
        k.I("v_mul_f32 v%d, v98, v%d" % (ACCR + r, ACCR + r))
    for r in range(4):
        k.LG("ds_write_b32 v103, v%d offset:%d" % (ACCR + 8 + r, 64 * r))
    k.I("s_mul_i32 s6, s2, %d" % KT_PITCH)
    k.I("s_add_u32 s6, s6, %d" % KT_OFF)
    k.I("v_lshrrev_b32 v8, 2, v0")
    k.I("v_mul_u32_u24 v8, 80, v8")
    k.I("v_and_b32 v9, 3, v0")
    k.I("v_lshl_add_u32 v8, v9, 4, v8")
    k.I("v_add_u32 v8, s6, v8")
    k.I("v_mov_b32 v3, 0")
    k.I("s_waitcnt lgkmcnt(0)")
    k.I("s_barrier")
    k.stamp(4)
    k.LG("ds_read_b128 v[4:7], v3 offset:%d" % MX, "mx")
    for i in range(8):
        for w in range(4):
            k.LG("ds_read_b32 v%d, v%d offset:%d" % (48 + 4 * i + w, IX + i, w * WBS), ("t", i))
    k.wait_lg("mx")
    k.I("v_max3_i32 v4, v4, v5, v6")
    k.I("v_max_i32 v5, v4, v7")
    k.I("v_sub_u32 v6, 7, v5")
    k.I("v_ldexp_f32 v6, 1.0, v6")
    k.I("v_subrev_u32 v7, 7, v5")
    k.I("v_ldexp_f32 v7, 1.0, v7")
    for i in range(8):
        b = 48 + 4 * i
        k.wait_lg(("t", i))
        k.I("v_add_f32 v%d, v%d, v%d" % (b, b, b + 1))
        k.I("v_add_f32 v%d, v%d, v%d" % (b + 2, b + 2, b + 3))
        k.I("v_add_f32 v%d, v%d, v%d" % (b, b, b + 2))
        k.I("v_mul_f32 v%d, v6, v%d" % (30 + i, b))
    for i in range(4):
        k.I("v_cvt_pk_f16_f32 v%d, v%d, v%d" % (40 + i, 30 + 2 * i, 31 + 2 * i))
    k.stamp(5)
    k.VM("global_store_dwordx4 v8, v[40:43], %s offset:%d" % (sp(P_WS), 31 * 80))
    k.I("v_mov_b32 v44, 0")
    k.I("v_mov_b32 v45, 0")
    k.I("v_mov_b32 v46, 0")
    k.I("v_mov_b32 v47, 0")
    k.I("v_lshlrev_b32 v9, 4, v0")
    k.I("v_add_u32 v9, s6, v9")
    k.I("s_mul_i32 s7, s2, %d" % UREV_PITCH)
    k.I("s_add_u32 s7, s7, %d" % (UREV_OFF + 4096 - 160 * 16))
    k.I("v_lshlrev_b32 v10, 4, v0")
    k.I("v_add_u32 v10, s7, v10")
    k.I("v_cmp_lt_u32 vcc, 159, v0")
    k.I("v_cndmask_b32 v9, v9, v10, vcc")
    k.I("s_mov_b64 s[8:9], vcc")
    k.I("v_cmp_gt_u32 vcc, 164, v0")
    k.I("s_and_b64 s[8:9], s[8:9], vcc")
    k.I("v_cmp_gt_u32 vcc, 155, v0")
    k.I("s_or_b64 vcc, vcc, s[8:9]")
    k.I("s_and_saveexec_b64 s[12:13], vcc")
    k.I("s_cbranch_execz K1_kg_s1")
    k.VM("global_store_dwordx4 v9, v[44:47], %s" % sp(P_WS))
    k.I("K1_kg_s1:")
    k.I("s_mov_b64 exec, s[12:13]")
    k.I("v_mov_b32 v9, s6")
    k.I("v_add_u32 v9, 7600, v9")
    k.I("v_cmp_eq_u32 vcc, 0, v0")
    k.I("s_and_saveexec_b64 s[12:13], vcc")
    k.I("s_cbranch_execz K1_kg_s2")
    k.VM("global_store_dword v9, v7, %s" % sp(P_WS))
    k.I("K1_kg_s2:")
    k.I("s_mov_b64 exec, s[12:13]")
    k.stamp_out(6, sp(P_WS))
    k.I("s_endpgm")


def role_ln1(k):
    RP = 960
    R = 4
    k.I("K1_ln1:")
    k.stamp(0)
    k.I("v_lshrrev_b32 v1, 6, v0")
    k.I("s_and_b32 s5, s2, 7")
    k.I("v_readfirstlane_b32 s4, v1")
    k.I("s_lshl_b32 s5, s5, 4")
    k.I("s_lshr_b32 s6, s2, 3")
    k.I("s_add_u32 s5, s5, s6")
    k.I("s_lshl_b32 s14, s5, 4")
    k.I("s_lshl_b32 s5, s4, 2")
    k.I("s_add_u32 s3, s14, s5")
    k.I("v_and_b32 v1, 63, v0")
    k.I("s_mul_i32 s5, s3, 896")
    k.I("v_lshlrev_b32 v2, 4, v1")
    k.I("v_add_u32 v3, s5, v2")
    X, XF = 8, 40
    for i in range(4 * R):
        k.I("v_mov_b32 v%d, 0" % (X + i))
    k.I("v_cmp_gt_u32 vcc, 56, v1")
    k.I("s_mul_i32 s6, s4, %d" % (R * RP))
    k.I("v_add_u32 v5, s6, v2")
    k.I("s_waitcnt lgkmcnt(0)")
    k.I("s_and_saveexec_b64 s[12:13], vcc")
    for r in range(R):
        k.VM("global_load_dwordx4 v[%d:%d], v3, %s offset:%d" % (X + 4 * r, X + 4 * r + 3, sp(P_U), 896 * r))
    k.I("s_mov_b64 exec, s[12:13]")
    k.I("v_bfe_u32 v6, v1, 4, 1")
    k.I("v_bfe_u32 v7, v1, 2, 2")
    k.I("v_lshl_add_u32 v104, v6, 3, v7")
    k.I("v_mul_u32_u24 v104, %d, v104" % RP)
    k.I("v_and_b32 v105, 3, v1")
    k.I("s_lshl_b32 s6, s4, 6")
    k.I("v_lshl_add_u32 v105, v105, 3, s6")
    k.I("v_lshrrev_b32 v111, 5, v1")
    k.I("v_lshl_add_u32 v105, v111, 5, v105")
    k.I("v_add_u32 v106, v104, v105")
    k.I("v_sub_u32 v104, 7, v7")
    k.I("v_lshl_add_u32 v104, v6, 3, v104")
    k.I("v_mul_u32_u24 v104, %d, v104" % RP)
    k.I("v_add_u32 v107, v104, v105")
    k.I("v_subrev_u32 v110, %d, v107" % (4 * RP))
    k.I("v_and_b32 v104, 15, v1")
    k.I("v_lshl_add_u32 v104, v111, 4, v104")
    k.I("s_lshl_b32 s6, s4, 5")
    k.I("v_add_u32 v104, s6, v104")
    k.I("v_mul_u32_u24 v108, %d, v104" % HP)
    k.I("v_lshl_add_u32 v108, v6, 4, v108")
    k.I("s_lshl_b32 s7, s14, 1")
    k.I("s_add_u32 s7, s7, %d" % XT_OFF)
    k.I("v_add_u32 v108, s7, v108")
    k.I("v_mul_u32_u24 v109, %d, v104" % UREV_PITCH)
    k.I("v_lshlrev_b32 v105, 4, v6")
    k.I("v_sub_u32 v109, v109, v105")
    k.I("s_sub_u32 s7, 2040, s14")
    k.I("s_lshl_b32 s7, s7, 1")
    k.I("v_add_u32 v109, s7, v109")
    k.I("s_waitcnt vmcnt(0)")
    k.stamp(1)
    k.I("s_and_saveexec_b64 s[12:13], vcc")
    for r in range(R):
        k.LG("ds_write_b128 v5, v[%d:%d] offset:%d" % (X + 4 * r, X + 4 * r + 3, r * RP))
    k.I("s_mov_b64 exec, s[12:13]")
    for r in range(R):
        for cp in range(4):
            s_ = X + 4 * r + cp
            d = XF + 8 * r + 2 * cp
            k.I("v_lshlrev_b32 v%d, 16, v%d" % (d, s_))
            k.I("v_and_b32 v%d, 0xffff0000, v%d" % (d + 1, s_))
    k.I("s_waitcnt lgkmcnt(0)")
    k.I("s_barrier")
    TR = 80

    def tr_store(a0, a1, off1, gaddr, gstep, lab):
        for n in range(4):
            o = TR + 4 * n
            if n == 3:
                k.I("s_cmp_ge_u32 s4, 2")
                k.I("s_cbranch_scc1 %s_a" % lab)
            k.LG("ds_read_b64_tr_b16 v[%d:%d], v%d offset:%d" % (o, o + 1, a0, 256 * n))
            k.LG("ds_read_b64_tr_b16 v[%d:%d], v%d offset:%d" % (o + 2, o + 3, a1, 256 * n + off1))
        k.I("%s_a:" % lab)
        k.I("s_waitcnt lgkmcnt(0)")
        for n in range(4):
            o = TR + 4 * n
            if n == 3:
                k.I("s_cbranch_scc1 %s_b" % lab)
            k.VM("global_store_dwordx4 v%d, v[%d:%d], %s" % (gaddr, o, o + 3, sp(P_WS)))
            if n < 3:
                k.I("v_add_u32 v%d, %d, v%d" % (gaddr, gstep, gaddr))
        k.I("%s_b:" % lab)

    k.stamp(2)
    tr_store(106, 106, 4 * RP, 108, 128 * HP, "K1_l1")
    k.stamp(3)
    MEAN, S, T = 112, 120, 24
    for r in range(R):
        b = XF + 8 * r
        k.I("v_add_f32 v%d, v%d, v%d" % (S + r, b, b + 1))
        k.I("v_add_f32 v%d, v%d, v%d" % (S + 4 + r, b + 2, b + 3))
    for c in (4, 6):
        for r in range(R):
            k.I("v_add_f32 v%d, v%d, v%d" % (S + r, S + r, XF + 8 * r + c))
            k.I("v_add_f32 v%d, v%d, v%d" % (S + 4 + r, S + 4 + r, XF + 8 * r + c + 1))
    for r in range(R):
        k.I("v_add_f32 v%d, v%d, v%d" % (S + r, S + r, S + 4 + r))
    dpp_reduce(k, "v_add_f32", [S + r for r in range(R)])
    for r in range(R):
        k.I("v_readlane_b32 s%d, v%d, 63" % (44 + r, S + r))
    k.I("v_mov_b32 v111, %s" % f32hex(1.0 / 448))
    for r in range(R):
        k.I("v_mul_f32 v%d, s%d, v111" % (MEAN + r, 44 + r))
    for r in range(2 * R):
        k.I("v_mov_b32 v%d, 0" % (S + r))
    k.I("s_and_saveexec_b64 s[12:13], vcc")
    for c in range(0, 8, 2):
        for r in range(R):
            k.I("v_sub_f32 v%d, v%d, v%d" % (T + r, XF + 8 * r + c, MEAN + r))
            k.I("v_sub_f32 v%d, v%d, v%d" % (T + 4 + r, XF + 8 * r + c + 1, MEAN + r))
        for r in range(R):
            k.I("v_fmac_f32 v%d, v%d, v%d" % (S + r, T + r, T + r))
            k.I("v_fmac_f32 v%d, v%d, v%d" % (S + 4 + r, T + 4 + r, T + 4 + r))
    k.I("s_mov_b64 exec, s[12:13]")
    for r in range(R):
        k.I("v_add_f32 v%d, v%d, v%d" % (S + r, S + r, S + 4 + r))
    dpp_reduce(k, "v_add_f32", [S + r for r in range(R)])
    for r in range(R):
        k.I("v_readlane_b32 s%d, v%d, 63" % (44 + r, S + r))
    for r in range(R):
        k.I("v_mul_f32 v%d, s%d, v111" % (S + r, 44 + r))
    for r in range(R):
        k.I("v_cvt_pk_bf16_f32 v%d, v%d, v%d" % (S + r, S + r, MEAN + r))
    for r in range(R):
        k.I("v_and_b32 v%d, 0xffff0000, v%d" % (MEAN + r, S + r))
        k.I("v_lshlrev_b32 v%d, 16, v%d" % (S + r, S + r))
    for r in range(R):
        k.I("v_add_f32 v%d, %s, v%d" % (S + r, f32hex(1e-5), S + r))
    for r in range(R):
        k.I("v_cvt_pk_bf16_f32 v%d, v%d, v%d" % (S + r, S + r, S + r))
    for r in range(R):
        k.I("v_lshlrev_b32 v%d, 16, v%d" % (S + r, S + r))
    for r in range(R):
        k.I("v_sqrt_f32 v%d, v%d" % (S + r, S + r))
    for r in range(R):
        k.I("v_cvt_pk_bf16_f32 v%d, v%d, v%d" % (S + r, S + r, S + r))
    for r in range(R):
        k.I("v_lshlrev_b32 v%d, 16, v%d" % (S + r, S + r))
    for r in range(R):
        k.I("v_rcp_f32 v%d, v%d" % (S + 4 + r, S + r))
    k.stamp(4)
    k.sched_begin()
    for r in range(R):
        b = XF + 8 * r
        T = 8 + 8 * r
        for c in range(8):
            k.I("v_sub_f32 v%d, v%d, v%d" % (b + c, b + c, MEAN + r))
        for c in range(0, 8, 2):
            k.I("v_cvt_pk_bf16_f32 v%d, v%d, v%d" % (T + c // 2, b + c, b + c + 1))
        for c in range(0, 8, 2):
            k.I("v_lshlrev_b32 v%d, 16, v%d" % (b + c, T + c // 2))
            k.I("v_and_b32 v%d, 0xffff0000, v%d" % (b + c + 1, T + c // 2))
        for c in range(8):
            k.I("v_mul_f32 v%d, v%d, v%d" % (T + c, S + 4 + r, b + c))
        for c in range(8):
            k.I("v_fma_f32 v%d, -v%d, v%d, v%d" % (b + c, T + c, S + r, b + c))
        for c in range(8):
            k.I("v_fma_f32 v%d, v%d, v%d, v%d" % (b + c, b + c, S + 4 + r, T + c))
        for c in range(0, 8, 2):
            k.I("v_cvt_pk_bf16_f32 v%d, v%d, v%d" % (T + c // 2, b + c, b + c + 1))
        for c in range(0, 8, 2):
            k.I("v_lshlrev_b32 v%d, 16, v%d" % (b + c, T + c // 2))
            k.I("v_and_b32 v%d, 0xffff0000, v%d" % (b + c + 1, T + c // 2))
        for c in range(0, 8, 2):
            k.I("v_cvt_pkrtz_f16_f32 v%d, v%d, v%d" % (T + c // 2, b + c, b + c + 1))
    k.sched_end()
    k.stamp(5)
    k.I("s_barrier")
    k.I("s_and_saveexec_b64 s[12:13], vcc")
    for r in range(R):
        T = 8 + 8 * r
        k.LG("ds_write_b128 v5, v[%d:%d] offset:%d" % (T, T + 3, r * RP))
    k.I("s_mov_b64 exec, s[12:13]")
    k.I("s_waitcnt vmcnt(0) lgkmcnt(0)")
    k.I("s_barrier")
    k.stamp(6)
    tr_store(107, 110, 0, 109, 128 * UREV_PITCH, "K1_l2")
    k.stamp_out(7, sp(P_WS), base=0x1D00000)
    k.I("s_endpgm")


def role_wp(k):
    RP = 192
    k.I("K1_wp:")
    k.stamp(0)
    k.I("s_sub_u32 s15, s2, %d" % (N_LN1 + N_KGEN))
    k.I("v_lshrrev_b32 v1, 6, v0")
    k.I("s_sub_u32 s3, s2, %d" % (N_LN1 + N_KGEN))
    k.I("v_readfirstlane_b32 s4, v1")
    k.I("v_and_b32 v1, 63, v0")
    k.I("s_lshl_b32 s3, s3, 3")
    k.I("s_lshl_b32 s5, s4, 1")
    k.I("s_add_u32 s3, s3, s5")
    k.I("s_mul_i32 s6, s4, %d" % (2 * 16 * RP))
    k.I("v_lshrrev_b32 v2, 3, v1")
    k.I("v_and_b32 v3, 7, v1")
    k.I("v_mul_u32_u24 v4, %d, v2" % RP)
    k.I("v_lshl_add_u32 v4, v3, 4, v4")
    k.I("v_add_u32 v4, s6, v4")
    k.I("v_lshrrev_b32 v5, 5, v1")
    k.I("v_bfe_u32 v6, v1, 2, 2")
    k.I("v_lshl_add_u32 v5, v5, 2, v6")
    k.I("v_mul_u32_u24 v5, %d, v5" % RP)
    k.I("v_bfe_u32 v6, v1, 4, 1")
    k.I("v_lshl_add_u32 v5, v6, 5, v5")
    k.I("v_and_b32 v6, 3, v1")
    k.I("v_lshl_add_u32 v5, v6, 3, v5")
    k.I("v_add_u32 v5, s6, v5")
    k.I("v_lshlrev_b32 v7, 4, v1")
    k.I("s_waitcnt lgkmcnt(0)")
    k.I("s_cmp_lt_u32 s3, 784")
    k.I("s_cbranch_scc0 K1_wp_w2")
    for which in range(2):
        if which == 1:
            k.I("K1_wp_w2:")
            k.I("s_sub_u32 s3, s3, 784")
        pitch, npr, nks, off, ptr = ((3584, 28, 28, W1F_OFF, P_W1), (896, 7, 112, W2F_OFF, P_W2))[which]
        magic = {28: 2341, 7: 9363}[npr]
        k.I("v_mul_u32_u24 v8, %d, v2" % pitch)
        k.I("v_lshl_add_u32 v8, v3, 4, v8")
        for t in range(2):
            k.I("s_add_u32 s7, s3, %d" % t)
            k.I("s_mul_i32 s8, s7, %d" % magic)
            k.I("s_lshr_b32 s8, s8, 16")
            k.I("s_mul_i32 s9, s8, %d" % npr)
            k.I("s_sub_u32 s9, s7, s9")
            k.I("s_mul_i32 s10, s8, %d" % (16 * pitch))
            k.I("s_lshl_b32 s11, s9, 7")
            k.I("s_add_u32 s10, s10, s11")
            k.I("v_add_u32 v9, s10, v8")
            k.I("v_add_u32 v10, %d, v9" % (8 * pitch))
            k.VM("global_load_dwordx4 v[%d:%d], v9, %s" % (16 + 8 * t, 19 + 8 * t, sp(ptr)))
            k.VM("global_load_dwordx4 v[%d:%d], v10, %s" % (20 + 8 * t, 23 + 8 * t, sp(ptr)), ("w", which, t))
            k.I("s_mul_i32 s10, s9, %d" % (2 * nks))
            k.I("s_add_u32 s10, s10, s8")
            k.I("s_lshl_b32 s10, s10, 10")
            k.I("s_add_u32 s10, s10, %d" % off)
            k.I("v_add_u32 v%d, s10, v7" % (11 + 2 * t))
            k.I("v_add_u32 v%d, %d, v%d" % (12 + 2 * t, nks * 1024, 11 + 2 * t))
        for t in range(2):
            k.wait_vm(("w", which, t))
            k.LG("ds_write_b128 v4, v[%d:%d] offset:%d" % (16 + 8 * t, 19 + 8 * t, t * 16 * RP))
            k.LG("ds_write_b128 v4, v[%d:%d] offset:%d" % (20 + 8 * t, 23 + 8 * t, t * 16 * RP + 8 * RP))
        for t in range(2):
            for tt in range(2):
                o = 32 + 8 * t + 4 * tt
                k.LG("ds_read_b64_tr_b16 v[%d:%d], v5 offset:%d" % (o, o + 1, t * 16 * RP + tt * 64))
                k.LG("ds_read_b64_tr_b16 v[%d:%d], v5 offset:%d" % (o + 2, o + 3, t * 16 * RP + tt * 64 + 8 * RP), ("r", which, t, tt))
        for t in range(2):
            for tt in range(2):
                o = 32 + 8 * t + 4 * tt
                k.wait_lg(("r", which, t, tt))
                k.VM("global_store_dwordx4 v%d, v[%d:%d], %s" % (11 + 2 * t + tt, o, o + 3, sp(P_WS)))
        k.stamp_out(1, sp(P_WS), wgreg="s15", base=0x1F80000)
        k.I("s_endpgm")


def role_cs(k):
    k.I("K1_cs:")
    k.I("s_sub_u32 s3, s2, %d" % (N_LN1 + N_KGEN + N_WP))
    k.I("s_lshl_b32 s4, s3, 7")
    k.I("v_lshrrev_b32 v1, 3, v0")
    k.I("v_and_b32 v2, 7, v0")
    k.I("v_mul_u32_u24 v3, %d, v1" % (14 * 3584))
    k.I("v_lshl_add_u32 v3, v2, 4, v3")
    k.I("v_add_u32 v3, s4, v3")
    k.I("v_lshlrev_b32 v4, 8, v1")
    k.I("v_lshl_add_u32 v4, v2, 5, v4")
    k.I("v_lshlrev_b32 v5, 2, v0")
    k.I("s_waitcnt lgkmcnt(0)")
    for r in range(14):
        k.VM("global_load_dwordx4 v[%d:%d], v3, %s" % (16 + 4 * r, 19 + 4 * r, sp(P_W1)), ("c", r))
        if r < 13:
            k.I("v_add_u32 v3, 3584, v3")
    for i in range(8):
        k.I("v_mov_b32 v%d, 0" % (8 + i))
    for r in range(14):
        k.wait_vm(("c", r))
        for q in range(4):
            k.I("v_lshlrev_b32 v%d, 16, v%d" % (80 + 2 * q, 16 + 4 * r + q))
            k.I("v_and_b32 v%d, 0xffff0000, v%d" % (81 + 2 * q, 16 + 4 * r + q))
        for q in range(8):
            k.I("v_add_f32 v%d, v%d, v%d" % (8 + q, 8 + q, 80 + q))
    k.LG("ds_write_b128 v4, v[8:11]")
    k.LG("ds_write_b128 v4, v[12:15] offset:16")
    k.I("s_waitcnt lgkmcnt(0)")
    k.I("s_barrier")
    k.I("v_cmp_gt_u32 vcc, 64, v0")
    k.I("s_and_saveexec_b64 s[12:13], vcc")
    k.I("s_cbranch_execz K1_exit")
    for r in range(32):
        k.LG("ds_read_b32 v%d, v5 offset:%d" % (16 + r, 256 * r))
    k.I("s_lshl_b32 s4, s3, 8")
    k.I("s_add_u32 s4, s4, %d" % CS_OFF)
    k.I("v_add_u32 v5, s4, v5")
    k.I("s_waitcnt lgkmcnt(0)")
    for st in (16, 8, 4, 2, 1):
        for r in range(st):
            k.I("v_add_f32 v%d, v%d, v%d" % (16 + r, 16 + r, 16 + st + r))
    k.VM("global_store_dword v5, v16, %s" % sp(P_WS))
    k.I("s_endpgm")


def gen_k1():
    k = Kern("k1_prep_kernel")
    k.I("s_cmp_ge_u32 s2, %d" % K1_WGS)
    k.I("s_cbranch_scc1 K1_exit")
    k.I("s_load_dwordx16 s[16:31], s[0:1], 0")
    k.I("s_load_dwordx8 s[32:39], s[0:1], 64")
    k.I("s_load_dwordx2 s[40:41], s[0:1], 112")
    only = os.environ.get("K1_ONLY", "kgen,ln1,wp,cs").split(",")
    tgt = lambda n: ("K1_" + n) if n in only else "K1_exit"
    k.I("s_cmp_lt_u32 s2, %d" % N_LN1)
    k.I("s_cbranch_scc1 " + tgt("ln1"))
    k.I("s_cmp_lt_u32 s2, %d" % (N_KGEN + N_LN1))
    k.I("s_cbranch_scc1 " + tgt("kgen"))
    k.I("s_cmp_lt_u32 s2, %d" % (N_KGEN + N_LN1 + N_WP))
    k.I("s_cbranch_scc1 " + tgt("wp"))
    k.I("s_branch " + tgt("cs"))
    k.I("K1_exit:")
    k.I("s_endpgm")
    role_kgen(k)
    role_ln1(k)
    role_wp(k)
    role_cs(k)
    return k
```

```python
from asmlib import *
from gen_k1 import *

K2_WGS = 448
UC, KTB, RED = 0, 33280, 40960
K2_LDS = RED + 32768


def gen_k2():
    k = Kern("k2_conv_kernel")
    k.I("s_cmp_ge_u32 s2, %d" % K2_WGS)
    k.I("s_cbranch_scc1 K2_exit")
    k.stamp(0)
    k.I("s_load_dwordx2 s[40:41], s[0:1], 112")
    k.I("s_load_dwordx2 s[28:29], s[0:1], 48")
    k.I("v_lshrrev_b32 v1, 6, v0")
    k.I("v_and_b32 v2, 63, v0")
    k.I("v_readfirstlane_b32 s4, v1")
    k.I("s_mul_i32 s5, s2, %d" % UREV_PITCH)
    k.I("s_mul_i32 s6, s2, %d" % KT_PITCH)
    k.I("s_add_u32 s6, s6, %d" % KT_OFF)
    k.I("v_lshlrev_b32 v3, 4, v0")
    k.I("v_add_u32 v4, s5, v3")
    k.I("v_add_u32 v5, s6, v3")
    k.I("s_waitcnt lgkmcnt(0)")
    k.I("s_add_u32 s8, s40, s6")
    k.I("s_addc_u32 s9, s41, 0")
    k.I("s_load_dword s10, s[8:9], 7600")
    k.I("s_lshl_b32 s17, s2, 1")
    k.I("s_and_b32 s17, s17, 0xfffffffc")
    k.I("s_load_dword s16, s[28:29], s17")
    k.VM("global_load_dwordx4 v[8:11], v4, s[40:41]")
    k.VM("global_load_dwordx4 v[12:15], v4, s[40:41] offset:16", "u")
    k.VM("global_load_dwordx4 v[16:19], v5, s[40:41]")
    k.I("v_add_u32 v6, 4096, v5")
    k.I("v_cmp_gt_u32 vcc, 224, v0")
    k.I("s_and_saveexec_b64 s[12:13], vcc")
    k.VM("global_load_dwordx4 v[20:23], v6, s[40:41]", "kt")
    k.I("s_mov_b64 exec, s[12:13]")
    k.I("s_lshr_b32 s14, s4, 1")
    k.I("s_lshl_b32 s14, s14, 11")
    k.I("s_and_b32 s15, s4, 1")
    k.I("s_lshl_b32 s15, s15, 5")
    k.I("s_add_u32 s14, s14, s15")
    k.I("s_mul_i32 s15, s2, %d" % HP)
    k.I("s_add_u32 s14, s14, s15")
    k.I("v_and_b32 v7, 31, v2")
    k.I("v_lshlrev_b32 v7, 6, v7")
    k.I("v_lshrrev_b32 v64, 5, v2")
    k.I("v_lshl_add_u32 v7, v64, 3, v7")
    k.I("v_add_u32 v7, s14, v7")
    k.I("v_add_u32 v64, %d, v7" % XT_OFF)
    k.I("v_subrev_u32 v65, s15, v7")
    k.I("v_sub_u32 v140, %d, v65" % (UC + 4088 - 16))
    k.I("v_add_u32 v7, %d, v7" % HT_OFF)
    k.VM("global_load_dwordx2 v[24:25], v64, s[40:41]")
    k.VM("global_load_dwordx2 v[26:27], v64, s[40:41] offset:16", "ep")
    k.I("v_mov_b32 v68, 0")
    k.I("v_mov_b32 v69, 0")
    k.I("v_mov_b32 v70, 0")
    k.I("v_mov_b32 v71, 0")
    k.I("v_lshrrev_b32 v66, 2, v0")
    k.I("v_mul_u32_u24 v66, 4160, v66")
    k.I("v_and_b32 v67, 3, v0")
    k.I("v_lshl_add_u32 v66, v67, 4, v66")
    k.I("v_cmp_gt_u32 vcc, 32, v0")
    k.I("s_and_saveexec_b64 s[12:13], vcc")
    k.LG("ds_write_b128 v66, v[68:71] offset:%d" % (UC + 4096))
    k.I("s_mov_b64 exec, s[12:13]")
    k.wait_vm("u")
    k.stamp(1)
    for c in range(8):
        if c % 2 == 0:
            src = 8 + c // 2
            if src % 2 == 0:
                k.LG("ds_write_b128 v3, v[%d:%d] offset:%d" % (src, src + 3, UC + c * 4160))
            else:
                for i in range(4):
                    k.I("v_mov_b32 v%d, v%d" % (72 + i, src + i))
                k.LG("ds_write_b128 v3, v[72:75] offset:%d" % (UC + c * 4160))
        else:
            b = 8 + (c - 1) // 2
            o = 76 + 4 * ((c // 2) % 2)
            for i in range(4):
                k.I("v_alignbyte_b32 v%d, v%d, v%d, 2" % (o + i, b + i + 1, b + i))
            k.LG("ds_write_b128 v3, v[%d:%d] offset:%d" % (o, o + 3, UC + c * 4160))
    k.wait_vm("kt")
    k.LG("ds_write_b128 v3, v[16:19] offset:%d" % KTB)
    k.I("v_cmp_gt_u32 vcc, 224, v0")
    k.I("s_and_saveexec_b64 s[12:13], vcc")
    k.LG("ds_write_b128 v3, v[20:23] offset:%d" % (KTB + 4096))
    k.I("s_mov_b64 exec, s[12:13]")
    k.I("v_and_b32 v64, 7, v2")
    k.I("v_sub_u32 v64, 7, v64")
    k.I("v_mul_u32_u24 v64, 4160, v64")
    k.I("v_lshrrev_b32 v65, 5, v2")
    k.I("v_bfe_u32 v66, v2, 3, 2")
    k.I("v_sub_u32 v66, v65, v66")
    k.I("s_lshl_b32 s14, s4, 1")
    k.I("s_sub_u32 s14, 9, s14")
    k.I("v_add_u32 v66, s14, v66")
    k.I("v_lshl_add_u32 v4, v66, 4, v64")
    k.I("s_lshr_b32 s14, s4, 1")
    k.I("s_sub_u32 s14, 1, s14")
    k.I("s_mul_i32 s14, s14, 80")
    k.I("s_and_b32 s15, s4, 1")
    k.I("s_xor_b32 s15, s15, 1")
    k.I("s_lshl_b32 s15, s15, 5")
    k.I("s_add_u32 s14, s14, s15")
    k.I("s_add_u32 s14, s14, %d" % KTB)
    k.I("v_and_b32 v64, 31, v2")
    k.I("v_mul_u32_u24 v64, 80, v64")
    k.I("v_lshl_add_u32 v64, v65, 4, v64")
    k.I("v_add_u32 v5, s14, v64")
    k.I("s_waitcnt lgkmcnt(0)")
    k.I("s_barrier")
    ACC0, ACC1, BUF = 32, 48, 72
    k.stamp(2)

    def issue(jj):
        b = BUF + 16 * (jj % 3)
        k.LG("ds_read_b128 v[%d:%d], v4 offset:%d" % (b, b + 3, (31 - jj) * 128))
        k.LG("ds_read_b128 v[%d:%d], v5 offset:%d" % (b + 8, b + 11, (31 - jj) * 160))
        k.LG("ds_read_b128 v[%d:%d], v4 offset:%d" % (b + 4, b + 7, (15 - jj) * 128))
        k.LG("ds_read_b128 v[%d:%d], v5 offset:%d" % (b + 12, b + 15, (15 - jj) * 160), ("it", jj))

    issue(0)
    issue(1)
    for jj in range(16):
        if jj + 2 < 16:
            issue(jj + 2)
        k.wait_lg(("it", jj))
        b = BUF + 16 * (jj % 3)
        c0 = "0" if jj == 0 else "v[%d:%d]" % (ACC0, ACC0 + 15)
        c1 = "0" if jj == 0 else "v[%d:%d]" % (ACC1, ACC1 + 15)
        k.I("v_mfma_f32_32x32x16_f16 v[%d:%d], v[%d:%d], v[%d:%d], %s" % (ACC1, ACC1 + 15, b, b + 3, b + 8, b + 11, c1))
        k.I("v_mfma_f32_32x32x16_f16 v[%d:%d], v[%d:%d], v[%d:%d], %s" % (ACC0, ACC0 + 15, b, b + 3, b + 12, b + 15, c0))
        k.I("v_mfma_f32_32x32x16_f16 v[%d:%d], v[%d:%d], v[%d:%d], v[%d:%d]" % (ACC1, ACC1 + 15, b + 4, b + 7, b + 12, b + 15, ACC1, ACC1 + 15))
    k.stamp(3)
    k.I("s_lshl_b32 s14, s4, 13")
    k.I("s_add_u32 s14, s14, %d" % RED)
    k.I("v_lshlrev_b32 v64, 4, v2")
    k.I("v_add_u32 v65, s14, v64")
    k.I("s_lshl_b32 s15, s4, 11")
    k.I("s_add_u32 s15, s15, %d" % RED)
    k.I("v_add_u32 v66, s15, v64")
    for t in range(2):
        for q in range(4):
            a = (ACC0 if t == 0 else ACC1) + 4 * q
            k.LG("ds_write_b128 v65, v[%d:%d] offset:%d" % (a, a + 3, (4 * t + q) * 1024))
    k.I("s_waitcnt lgkmcnt(0)")
    k.I("s_barrier")
    R = 72
    k.stamp(4)
    k.LG("ds_read_b64 v[132:133], v140 offset:16")
    k.LG("ds_read_b64 v[134:135], v140", "uw")
    for qq in range(2):
        for w in range(4):
            r = R + 16 * qq + 4 * w
            k.LG("ds_read_b128 v[%d:%d], v66 offset:%d" % (r, r + 3, w * 8192 + qq * 1024))
    k.I("s_and_b32 s17, s2, 1")
    k.I("s_lshl_b32 s17, s17, 4")
    k.I("s_lshr_b32 s16, s16, s17")
    k.I("s_lshl_b32 s16, s16, 16")
    k.wait_lg("uw")
    for qq in range(2):
        ua, ub = 132 + 2 * qq, 133 + 2 * qq
        k.I("v_fma_mix_f32 v136, v%d, s16, 0 op_sel:[1,0,0] op_sel_hi:[1,0,0]" % ub)
        k.I("v_fma_mix_f32 v137, v%d, s16, 0 op_sel:[0,0,0] op_sel_hi:[1,0,0]" % ub)
        k.I("v_fma_mix_f32 v138, v%d, s16, 0 op_sel:[1,0,0] op_sel_hi:[1,0,0]" % ua)
        k.I("v_fma_mix_f32 v139, v%d, s16, 0 op_sel:[0,0,0] op_sel_hi:[1,0,0]" % ua)
        k.I("v_cvt_pk_bf16_f32 v%d, v136, v137" % (28 + 2 * qq))
        k.I("v_cvt_pk_bf16_f32 v%d, v138, v139" % (29 + 2 * qq))
    k.I("s_waitcnt lgkmcnt(0)")
    for qq in range(2):
        r = R + 16 * qq
        for i in range(4):
            k.I("v_add_f32 v%d, v%d, v%d" % (r + i, r + i, r + 4 + i))
            k.I("v_add_f32 v%d, v%d, v%d" % (r + 8 + i, r + 8 + i, r + 12 + i))
        for i in range(4):
            k.I("v_add_f32 v%d, v%d, v%d" % (r + i, r + i, r + 8 + i))
        for i in range(4):
            k.I("v_mul_f32 v%d, s10, v%d" % (r + i, r + i))
    k.wait_vm("ep")
    k.stamp(5)
    for qq in range(2):
        r = R + 16 * qq
        xs, ws = 24 + 2 * qq, 28 + 2 * qq
        for p in range(2):
            a, b = r + 2 * p, r + 2 * p + 1
            t0, t1, t2 = r + 4, r + 5, r + 6
            k.I("v_cvt_pk_bf16_f32 v%d, v%d, v%d" % (t0, a, b))
            k.I("v_lshlrev_b32 v%d, 16, v%d" % (a, t0))
            k.I("v_and_b32 v%d, 0xffff0000, v%d" % (b, t0))
            k.I("v_lshlrev_b32 v%d, 16, v%d" % (t1, ws + p))
            k.I("v_and_b32 v%d, 0xffff0000, v%d" % (t2, ws + p))
            k.I("v_add_f32 v%d, v%d, v%d" % (a, a, t1))
            k.I("v_add_f32 v%d, v%d, v%d" % (b, b, t2))
            k.I("v_cvt_pk_bf16_f32 v%d, v%d, v%d" % (t0, a, b))
            k.I("v_lshlrev_b32 v%d, 16, v%d" % (a, t0))
            k.I("v_and_b32 v%d, 0xffff0000, v%d" % (b, t0))
            k.I("v_lshlrev_b32 v%d, 16, v%d" % (t1, xs + p))
            k.I("v_and_b32 v%d, 0xffff0000, v%d" % (t2, xs + p))
            k.I("v_add_f32 v%d, v%d, v%d" % (a, a, t1))
            k.I("v_add_f32 v%d, v%d, v%d" % (b, b, t2))
            k.I("v_cvt_pk_bf16_f32 v%d, v%d, v%d" % (r + 8 + p, a, b))
        k.VM("global_store_dwordx2 v7, v[%d:%d], s[40:41] offset:%d" % (r + 8, r + 9, 16 * qq))
    k.stamp_out(6, "s[40:41]", base=0x1F00000)
    k.I("K2_exit:")
    k.I("s_endpgm")
    return k
```

```python
from asmlib import *
from gen_k1 import *

K3_WGS = 224
ST = 114688
K3_LDS = ST + 2048
GK1 = -2.0 * 0.7978845608028654 * L2E
GK2 = GK1 * 0.044715


def gen_k3():
    k = Kern("k3_gemm1_kernel")
    k.I("s_cmp_ge_u32 s2, %d" % K3_WGS)
    k.I("s_cbranch_scc1 K3_exit")
    k.stamp(0)
    k.I("s_load_dwordx2 s[40:41], s[0:1], 112")
    k.I("s_load_dwordx2 s[34:35], s[0:1], 72")
    k.I("v_lshrrev_b32 v1, 6, v0")
    k.I("v_and_b32 v2, 63, v0")
    k.I("v_readfirstlane_b32 s4, v1")
    k.I("s_and_b32 s5, s2, 7")
    k.I("s_lshr_b32 s6, s2, 3")
    k.I("s_mul_i32 s7, s6, 37")
    k.I("s_lshr_b32 s7, s7, 8")
    k.I("s_mul_i32 s8, s7, 7")
    k.I("s_sub_u32 s6, s6, s8")
    k.I("s_and_b32 s8, s5, 1")
    k.I("s_mul_i32 s8, s8, 7")
    k.I("s_add_u32 s6, s6, s8")
    k.I("s_lshr_b32 s5, s5, 1")
    k.I("s_lshl_b32 s5, s5, 2")
    k.I("s_add_u32 s5, s5, s7")
    k.I("s_lshl_b32 s9, s6, 2")
    k.I("s_add_u32 s9, s9, s4")
    for i in range(7):
        k.I("s_mov_b32 s%d, %d" % (48 + i, 4096 * i))
    k.I("v_lshrrev_b32 v3, 4, v2")
    k.I("v_bfe_u32 v4, v2, 2, 2")
    k.I("v_xor_b32 v4, v4, v3")
    k.I("v_mul_u32_u24 v5, %d, v3" % HP)
    k.I("v_lshl_add_u32 v5, v4, 6, v5")
    k.I("v_and_b32 v4, 3, v2")
    k.I("v_lshl_add_u32 v5, v4, 4, v5")
    k.I("s_lshl_b32 s12, s5, 8")
    k.I("s_add_u32 s12, s12, %d" % HT_OFF)
    k.I("v_add_u32 v5, s12, v5")
    k.I("s_mul_i32 s12, s9, 28672")
    k.I("s_add_u32 s12, s12, %d" % W1F_OFF)
    k.I("v_lshlrev_b32 v6, 4, v2")
    k.I("v_add_u32 v6, s12, v6")
    k.I("s_waitcnt lgkmcnt(0)")
    k.I("s_mov_b32 s44, s40")
    k.I("s_and_b32 s45, s41, 0xffff")
    k.I("s_mov_b32 s46, %d" % WS_USED)
    k.I("s_mov_b32 s47, 0x00020000")
    k.I("s_lshl_b32 s13, s4, 10")
    k.I("s_mul_i32 s14, s4, %d" % (4 * HP))
    ACC, AR, BR, CSR, B1R = 16, 80, 144, 192, 208
    AD = 12

    def dma(i):
        k.I("s_mov_b32 m0, s13")
        k.VM("buffer_load_dwordx4 v5, s[44:47], s14 offen lds", ("dma", i))
        k.I("s_add_u32 s13, s13, 4096")
        k.I("s_add_u32 s14, s14, %d" % (16 * HP))

    def loadA(ks):
        r = AR + 4 * (ks % AD)
        so = "s%d" % (48 + ks // 4)
        k.VM("buffer_load_dwordx4 v[%d:%d], v6, s[44:47], %s offen offset:%d" % (r, r + 3, so, 1024 * (ks % 4)), ("A", ks))

    for i in range(7):
        dma(i)
    for ks in range(7):
        loadA(ks)
    for i in range(7, 14):
        dma(i)
    for ks in range(7, AD):
        loadA(ks)
    for i in range(14, 28):
        dma(i)
    k.I("v_lshrrev_b32 v8, 5, v2")
    k.I("s_lshl_b32 s12, s9, 7")
    k.I("s_add_u32 s12, s12, %d" % CS_OFF)
    k.I("v_lshl_add_u32 v9, v8, 4, s12")
    for q in range(4):
        r = CSR + 4 * q
        k.VM("buffer_load_dwordx4 v[%d:%d], v9, s[44:47], 0 offen offset:%d" % (r, r + 3, 32 * q))
    k.I("s_lshl_b32 s12, s9, 6")
    k.I("v_lshl_add_u32 v10, v8, 3, s12")
    for q in range(4):
        r = B1R + 2 * q
        k.VM("global_load_dwordx2 v[%d:%d], v10, s[34:35] offset:%d" % (r, r + 1, 16 * q), "consts")
    k.I("v_lshrrev_b32 v3, 5, v2")
    k.I("v_bfe_u32 v4, v2, 2, 2")
    k.I("v_lshl_add_u32 v11, v3, 2, v4")
    k.I("v_lshlrev_b32 v11, 8, v11")
    k.I("v_bfe_u32 v12, v2, 4, 1")
    k.I("v_lshl_add_u32 v11, v12, 5, v11")
    k.I("v_and_b32 v12, 3, v2")
    k.I("v_lshl_add_u32 v11, v12, 3, v11")
    BA = 224
    for b in range(4):
        k.I("v_xor_b32 v12, %d, v4" % b)
        k.I("v_lshl_add_u32 v%d, v12, 6, v11" % (BA + b))
        k.I("v_add_u32 v%d, 57344, v%d" % (BA + 4 + b, BA + b))
    k.I("v_mov_b32 v240, 0")
    k.I("v_mov_b32 v241, 0")
    k.I("v_mov_b32 v242, 0")
    k.I("v_mov_b32 v243, 0")
    k.I("s_cmp_eq_u32 s4, 0")
    k.I("s_cbranch_scc1 K3_rot_done")
    k.I("s_mov_b32 s15, s4")
    k.I("K3_rot:")
    for base in (BA, BA + 4):
        k.I("v_mov_b32 v12, v%d" % base)
        k.I("v_mov_b32 v%d, v%d" % (base, base + 1))
        k.I("v_mov_b32 v%d, v%d" % (base + 1, base + 2))
        k.I("v_mov_b32 v%d, v%d" % (base + 2, base + 3))
        k.I("v_mov_b32 v%d, v12" % (base + 3))
    k.I("s_sub_u32 s15, s15, 1")
    k.I("s_cmp_lg_u32 s15, 0")
    k.I("s_cbranch_scc1 K3_rot")
    k.I("K3_rot_done:")

    def readB(ks):
        r = BR + 16 * (ks % 3)
        ab = BA if ks < 14 else BA + 4
        off = (ks % 14) * 4096
        for b in range(4):
            k.LG("ds_read_b64_tr_b16 v[%d:%d], v%d offset:%d" % (r + 4 * b, r + 4 * b + 1, ab + b, off))
            k.LG("ds_read_b64_tr_b16 v[%d:%d], v%d offset:%d" % (r + 4 * b + 2, r + 4 * b + 3, ab + b, off + 2048),
                 ("B", ks, b))

    for ks in range(28):
        if ks % 7 == 0:
            k.wait_vm(("dma", ks + 6))
            k.I("s_barrier")
            k.stamp(1 + ks // 7)
            readB(ks)
            readB(ks + 1)
        elif ks % 7 < 6:
            readB(ks + 1)
        k.wait_vm(("A", ks))
        ar = AR + 4 * (ks % AD)
        br = BR + 16 * (ks % 3)
        for b in range(4):
            k.wait_lg(("B", ks, b))
            c = ACC + 16 * b
            cs = "0" if ks == 0 else "v[%d:%d]" % (c, c + 15)
            k.I("v_mfma_f32_32x32x16_bf16 v[%d:%d], v[%d:%d], v[%d:%d], %s" %
                (c, c + 15, ar, ar + 3, br + 4 * b, br + 4 * b + 3, cs))
            t0 = 244 + 2 * (b % 2)
            k.I("v_lshlrev_b32 v%d, 16, v%d" % (t0, br + b))
            k.I("v_and_b32 v%d, 0xffff0000, v%d" % (t0 + 1, br + b))
            k.I("v_add_f32 v240, v240, v%d" % t0)
            k.I("v_fmac_f32 v241, v%d, v%d" % (t0, t0))
            k.I("v_add_f32 v242, v242, v%d" % (t0 + 1))
            k.I("v_fmac_f32 v243, v%d, v%d" % (t0 + 1, t0 + 1))
        if ks + AD < 28:
            loadA(ks + AD)
    k.stamp(5)
    k.I("s_lshl_b32 s12, s4, 9")
    k.I("v_lshl_add_u32 v3, v2, 3, s12")
    k.I("v_add_u32 v3, %d, v3" % ST)
    k.I("v_add_f32 v240, v240, v242")
    k.I("v_add_f32 v241, v241, v243")
    k.LG("ds_write_b64 v3, v[240:241]")
    k.I("v_and_b32 v4, 31, v2")
    k.I("v_lshlrev_b32 v4, 3, v4")
    for b in range(4):
        k.I("s_add_u32 s12, s4, %d" % b)
        k.I("s_and_b32 s12, s12, 3")
        k.I("s_lshl_b32 s12, s12, 9")
        k.I("s_add_u32 s12, s12, %d" % ST)
        k.I("v_add_u32 v%d, s12, v4" % (BA + b))
    k.I("s_waitcnt lgkmcnt(0)")
    k.I("s_barrier")
    SR = 144
    for b in range(4):
        k.LG("ds_read2_b64 v[%d:%d], v%d offset0:0 offset1:32" % (SR + 4 * b, SR + 4 * b + 3, BA + b), "st")
    k.wait_lg("st")
    NR = 160
    k.sched_begin()
    for b in range(4):
        s = SR + 4 * b
        k.I("v_add_f32 v%d, v%d, v%d" % (s, s, s + 2))
        k.I("v_add_f32 v%d, v%d, v%d" % (s + 1, s + 1, s + 3))
        k.I("v_mul_f32 v%d, %s, v%d" % (s, f32hex(1.0 / 448), s))
        k.I("v_mul_f32 v%d, %s, v%d" % (s + 1, f32hex(1.0 / 448), s + 1))
        k.I("v_fma_f32 v%d, -v%d, v%d, v%d" % (s + 1, s, s, s + 1))
        k.I("v_max_f32 v%d, 0, v%d" % (s + 1, s + 1))
        k.I("v_cvt_pk_bf16_f32 v%d, v%d, -v%d" % (s + 2, s + 1, s))
        k.I("v_and_b32 v%d, 0xffff0000, v%d" % (NR + 2 * b, s + 2))
        k.I("v_lshlrev_b32 v%d, 16, v%d" % (s + 2, s + 2))
        k.I("v_add_f32 v%d, %s, v%d" % (s + 2, f32hex(1e-5), s + 2))
        k.I("v_cvt_pk_bf16_f32 v%d, v%d, v%d" % (s + 2, s + 2, s + 2))
        k.I("v_lshlrev_b32 v%d, 16, v%d" % (s + 2, s + 2))
        k.I("v_sqrt_f32 v%d, v%d" % (s + 2, s + 2))
        k.I("v_cvt_pk_bf16_f32 v%d, v%d, v%d" % (s + 2, s + 2, s + 2))
        k.I("v_lshlrev_b32 v%d, 16, v%d" % (s + 2, s + 2))
        k.I("v_rcp_f32 v%d, v%d" % (NR + 2 * b + 1, s + 2))
    k.sched_end()
    k.wait_vm("consts")
    k.I("s_waitcnt lgkmcnt(0)")
    k.I("v_lshlrev_b32 v3, 4, v2")
    for b in range(4):
        k.I("s_add_u32 s12, s4, %d" % b)
        k.I("s_and_b32 s12, s12, 3")
        k.I("s_lshl_b32 s13, s5, 2")
        k.I("s_add_u32 s12, s12, s13")
        k.I("s_mul_i32 s12, s12, 112")
        k.I("s_lshl_b32 s13, s9, 1")
        k.I("s_add_u32 s12, s12, s13")
        k.I("s_lshl_b32 s12, s12, 10")
        k.I("s_add_u32 s12, s12, %d" % HF_OFF)
        k.I("v_add_u32 v%d, s12, v3" % (BA + b))
    k.I("s_mov_b32 s16, 0x00003f80")
    k.I("s_mov_b32 s17, 0x3f800000")
    KK, ONE = 168, 170
    k.I("v_mov_b32 v%d, %s" % (KK, f32hex(GK1)))
    k.I("v_mov_b32 v%d, %s" % (KK + 1, f32hex(GK2)))
    k.I("v_mov_b32 v%d, 1.0" % ONE)
    k.I("v_mov_b32 v%d, 1.0" % (ONE + 1))
    k.stamp(6)
    B1F = 80
    for q in range(4):
        for p in range(2):
            k.I("v_lshlrev_b32 v%d, 16, v%d" % (B1F + 4 * q + 2 * p, B1R + 2 * q + p))
            k.I("v_and_b32 v%d, 0xffff0000, v%d" % (B1F + 4 * q + 2 * p + 1, B1R + 2 * q + p))
    OUT = 128
    TT = 96
    P = lambda r: "v[%d:%d]" % (r, r + 1)
    for b in range(4):
        c = ACC + 16 * b
        nr = NR + 2 * b
        k.sched_begin()
        for j in range(2):
            o = OUT + 4 * ((2 * b + j) % 4)
            T = TT + 16 * j
            for r in range(8 * j, 8 * j + 8, 2):
                x = c + r
                t = T + 2 * ((r % 8) // 2)
                t2 = T + 8 + 2 * ((r % 8) // 2)
                k.I("v_pk_fma_f32 %s, %s, %s, %s op_sel:[0,0,0] op_sel_hi:[1,0,1]" % (P(x), P(CSR + r), P(nr), P(x)))
                k.I("v_pk_mul_f32 %s, %s, %s op_sel:[0,1] op_sel_hi:[1,1]" % (P(x), P(x), P(nr)))
                k.I("v_cvt_pk_bf16_f32 v%d, v%d, v%d" % (t, x, x + 1))
                k.I("v_dot2_f32_bf16 v%d, v%d, s16, v%d" % (x, t, B1F + r))
                k.I("v_dot2_f32_bf16 v%d, v%d, s17, v%d" % (x + 1, t, B1F + r + 1))
                k.I("v_cvt_pk_bf16_f32 v%d, v%d, v%d" % (t, x, x + 1))
                k.I("v_lshlrev_b32 v%d, 16, v%d" % (x, t))
                k.I("v_and_b32 v%d, 0xffff0000, v%d" % (x + 1, t))
                k.I("v_pk_mul_f32 %s, %s, %s" % (P(t), P(x), P(x)))
                k.I("v_pk_fma_f32 %s, %s, %s, %s op_sel:[0,1,0] op_sel_hi:[1,1,0]" % (P(t), P(t), P(KK), P(KK)))
                k.I("v_pk_mul_f32 %s, %s, %s" % (P(t), P(t), P(x)))
                k.I("v_exp_f32 v%d, v%d" % (t2, t))
                k.I("v_exp_f32 v%d, v%d" % (t2 + 1, t + 1))
                k.I("v_pk_add_f32 %s, %s, %s" % (P(t2), P(t2), P(ONE)))
                k.I("v_rcp_f32 v%d, v%d" % (t, t2))
                k.I("v_rcp_f32 v%d, v%d" % (t + 1, t2 + 1))
                k.I("v_pk_mul_f32 %s, %s, %s" % (P(x), P(x), P(t)))
                k.I("v_cvt_pk_bf16_f32 v%d, v%d, v%d" % (o + (r % 8) // 2, x, x + 1))
        k.sched_end()
        for j in range(2):
            o = OUT + 4 * ((2 * b + j) % 4)
            k.VM("global_store_dwordx4 v%d, v[%d:%d], s[40:41] offset:%d" % (BA + b, o, o + 3, 1024 * j))
    k.stamp_out(7, "s[40:41]", base=0x1E00000)
    k.I("K3_exit:")
    k.I("s_endpgm")
    return k
```

```python
from asmlib import *
from gen_k1 import *

K4_WGS = 224
K4_LDS = 65536


def gen_k4():
    k = Kern("k4_gemm2_kernel")
    k.I("s_cmp_ge_u32 s2, %d" % K4_WGS)
    k.I("s_cbranch_scc1 K4_exit")
    k.stamp(0)
    k.I("s_load_dwordx2 s[40:41], s[0:1], 112")
    k.I("s_load_dwordx4 s[36:39], s[0:1], 88")
    k.I("v_lshrrev_b32 v1, 6, v0")
    k.I("v_and_b32 v2, 63, v0")
    k.I("v_readfirstlane_b32 s4, v1")
    k.I("s_and_b32 s5, s2, 7")
    k.I("s_lshr_b32 s6, s2, 3")
    k.I("s_mul_i32 s7, s6, 37")
    k.I("s_lshr_b32 s7, s7, 8")
    k.I("s_lshl_b32 s5, s5, 2")
    k.I("s_add_u32 s5, s5, s7")
    k.I("s_mul_i32 s7, s7, 7")
    k.I("s_sub_u32 s6, s6, s7")
    for i in range(7):
        k.I("s_mov_b32 s%d, %d" % (48 + i, 4096 * i))
    k.I("s_mul_i32 s8, s6, 224")
    k.I("s_mul_i32 s9, s4, 28")
    k.I("s_add_u32 s8, s8, s9")
    k.I("s_lshl_b32 s8, s8, 10")
    k.I("s_add_u32 s8, s8, %d" % W2F_OFF)
    k.I("s_mul_i32 s10, s5, 224")
    k.I("s_add_u32 s10, s10, s9")
    k.I("s_lshl_b32 s10, s10, 10")
    k.I("s_add_u32 s10, s10, %d" % HF_OFF)
    k.I("v_lshlrev_b32 v3, 4, v2")
    k.I("v_add_u32 v4, s8, v3")
    k.I("v_add_u32 v5, %d, v4" % (112 * 1024))
    k.I("v_add_u32 v6, s10, v3")
    k.I("v_add_u32 v7, %d, v6" % (112 * 1024))
    k.I("s_waitcnt lgkmcnt(0)")
    k.I("s_mov_b32 s44, s40")
    k.I("s_and_b32 s45, s41, 0xffff")
    k.I("s_mov_b32 s46, %d" % WS_USED)
    k.I("s_mov_b32 s47, 0x00020000")
    ACC, RING, HR, B2R = 16, 80, 208, 224
    DEPTH = 8

    def load(ks):
        r = RING + 16 * (ks % DEPTH)
        so = "s%d" % (48 + ks // 4)
        for i, va in enumerate((4, 5, 6, 7)):
            k.VM("buffer_load_dwordx4 v[%d:%d], v%d, s[44:47], %s offen offset:%d" %
                 (r + 4 * i, r + 4 * i + 3, va, so, 1024 * (ks % 4)), ("L", ks) if i == 3 else None)

    for ks in range(DEPTH):
        load(ks)
    k.I("s_lshr_b32 s11, s4, 1")
    k.I("s_lshl_b32 s11, s11, 5")
    k.I("s_lshl_b32 s12, s6, 6")
    k.I("s_add_u32 s11, s11, s12")
    k.I("s_and_b32 s12, s4, 1")
    k.I("s_lshl_b32 s12, s12, 5")
    k.I("s_lshl_b32 s13, s5, 6")
    k.I("s_add_u32 s12, s12, s13")
    k.I("v_lshrrev_b32 v8, 5, v2")
    k.I("v_lshl_add_u32 v9, v8, 2, s11")
    k.I("v_and_b32 v10, 31, v2")
    k.I("v_add_u32 v10, s12, v10")
    k.I("v_mul_u32_u24 v11, %d, v9" % HP)
    k.I("v_lshl_add_u32 v11, v10, 1, v11")
    k.I("v_add_u32 v11, %d, v11" % HT_OFF)
    k.I("v_lshlrev_b32 v12, 1, v9")
    k.I("v_mul_u32_u24 v13, 896, v10")
    k.I("v_lshl_add_u32 v13, v9, 1, v13")
    for q in range(4):
        for i in range(4):
            k.I("v_add_u32 v14, %d, v11" % ((8 * q + i) * HP))
            k.VM("global_load_ushort v%d, v14, s[40:41]" % (HR + 4 * q + i))
    for q in range(4):
        k.VM("global_load_dwordx2 v[%d:%d], v12, s[36:37] offset:%d" % (B2R + 2 * q, B2R + 2 * q + 1, 16 * q), "ep")
    for ks in range(28):
        k.wait_vm(("L", ks))
        if ks % 7 == 0:
            k.stamp(1 + ks // 7)
        r = RING + 16 * (ks % DEPTH)
        for a in range(2):
            for b in range(2):
                c = ACC + 16 * (2 * a + b)
                cs = "0" if ks == 0 else "v[%d:%d]" % (c, c + 15)
                k.I("v_mfma_f32_32x32x16_bf16 v[%d:%d], v[%d:%d], v[%d:%d], %s" %
                    (c, c + 15, r + 4 * a, r + 4 * a + 3, r + 8 + 4 * b, r + 8 + 4 * b + 3, cs))
        if ks + DEPTH < 28:
            load(ks + DEPTH)
    k.stamp(5)
    k.I("s_lshl_b32 s14, s4, 14")
    k.I("v_add_u32 v14, s14, v3")
    k.I("s_lshl_b32 s15, s4, 12")
    k.I("v_add_u32 v15, s15, v3")
    for t in range(4):
        for q in range(4):
            a = ACC + 16 * t + 4 * q
            k.LG("ds_write_b128 v14, v[%d:%d] offset:%d" % (a, a + 3, (4 * t + q) * 1024))
    k.I("s_waitcnt lgkmcnt(0)")
    k.I("s_barrier")
    R = 80
    for q in range(4):
        for w in range(4):
            r = R + 16 * q + 4 * w
            k.LG("ds_read_b128 v[%d:%d], v15 offset:%d" % (r, r + 3, w * 16384 + q * 1024))
    k.I("s_waitcnt lgkmcnt(0)")
    k.wait_vm("ep")
    k.stamp(6)
    for q in range(4):
        r = R + 16 * q
        for i in range(4):
            k.I("v_add_f32 v%d, v%d, v%d" % (r + i, r + i, r + 4 + i))
            k.I("v_add_f32 v%d, v%d, v%d" % (r + 8 + i, r + 8 + i, r + 12 + i))
        for i in range(4):
            k.I("v_add_f32 v%d, v%d, v%d" % (r + i, r + i, r + 8 + i))
        for p in range(2):
            a, b = r + 2 * p, r + 2 * p + 1
            t0, t1, t2 = r + 4, r + 5, r + 6
            k.I("v_cvt_pk_bf16_f32 v%d, v%d, v%d" % (t0, a, b))
            k.I("v_lshlrev_b32 v%d, 16, v%d" % (a, t0))
            k.I("v_and_b32 v%d, 0xffff0000, v%d" % (b, t0))
            k.I("v_lshlrev_b32 v%d, 16, v%d" % (t1, B2R + 2 * q + p))
            k.I("v_and_b32 v%d, 0xffff0000, v%d" % (t2, B2R + 2 * q + p))
            k.I("v_add_f32 v%d, v%d, v%d" % (a, a, t1))
            k.I("v_add_f32 v%d, v%d, v%d" % (b, b, t2))
            k.I("v_cvt_pk_bf16_f32 v%d, v%d, v%d" % (t0, a, b))
            k.I("v_lshlrev_b32 v%d, 16, v%d" % (a, t0))
            k.I("v_and_b32 v%d, 0xffff0000, v%d" % (b, t0))
            k.I("v_lshlrev_b32 v%d, 16, v%d" % (t1, HR + 4 * q + 2 * p))
            k.I("v_lshlrev_b32 v%d, 16, v%d" % (t2, HR + 4 * q + 2 * p + 1))
            k.I("v_add_f32 v%d, v%d, v%d" % (a, a, t1))
            k.I("v_add_f32 v%d, v%d, v%d" % (b, b, t2))
            k.I("v_cvt_pk_bf16_f32 v%d, v%d, v%d" % (r + 8 + p, a, b))
        k.VM("global_store_dwordx2 v13, v[%d:%d], s[38:39] offset:%d" % (r + 8, r + 9, 16 * q))
    k.stamp_out(7, "s[40:41]", base=0x1E80000)
    k.I("K4_exit:")
    k.I("s_endpgm")
    return k
```

```python
from asmlib import *
from gen_k1 import *

K2_WGS = 448
UC, KTB, RED = 0, 33280, 40960
QS2 = 1088
K2_LDS = RED + 32 * QS2


def gen_k2():
    k = Kern("k2_conv_kernel")
    k.I("s_cmp_ge_u32 s2, %d" % K2_WGS)
    k.I("s_cbranch_scc1 K2_exit")
    k.stamp(0)
    k.I("s_load_dwordx2 s[40:41], s[0:1], 112")
    k.I("s_load_dwordx2 s[28:29], s[0:1], 48")
    k.I("v_lshrrev_b32 v1, 6, v0")
    k.I("v_and_b32 v2, 63, v0")
    k.I("v_readfirstlane_b32 s4, v1")
    k.I("s_mul_i32 s5, s2, %d" % UREV_PITCH)
    k.I("s_mul_i32 s6, s2, %d" % KT_PITCH)
    k.I("s_add_u32 s6, s6, %d" % KT_OFF)
    k.I("v_lshlrev_b32 v3, 4, v0")
    k.I("v_add_u32 v4, s5, v3")
    k.I("v_add_u32 v5, s6, v3")
    k.I("s_waitcnt lgkmcnt(0)")
    k.I("s_add_u32 s8, s40, s6")
    k.I("s_addc_u32 s9, s41, 0")
    k.I("s_load_dword s10, s[8:9], 7600")
    k.I("s_lshl_b32 s17, s2, 1")
    k.I("s_and_b32 s17, s17, 0xfffffffc")
    k.I("s_load_dword s16, s[28:29], s17")
    k.VM("global_load_dwordx4 v[8:11], v4, s[40:41]")
    k.VM("global_load_dwordx4 v[12:15], v4, s[40:41] offset:16", "u")
    k.VM("global_load_dwordx4 v[16:19], v5, s[40:41]")
    k.I("v_add_u32 v6, 4096, v5")
    k.I("v_cmp_gt_u32 vcc, 224, v0")
    k.I("s_and_saveexec_b64 s[12:13], vcc")
    k.VM("global_load_dwordx4 v[20:23], v6, s[40:41]", "kt")
    k.I("s_mov_b64 exec, s[12:13]")
    k.I("s_mul_i32 s15, s2, %d" % HP)
    k.I("v_add_u32 v7, s15, v3")
    k.I("v_add_u32 v64, %d, v7" % XT_OFF)
    k.I("v_add_u32 v7, %d, v7" % HT_OFF)
    k.I("v_sub_u32 v140, %d, v3" % (UC + 4080))
    k.VM("global_load_dwordx4 v[24:27], v64, s[40:41]", "ep")
    k.I("v_lshrrev_b32 v141, 7, v0")
    k.I("v_lshlrev_b32 v141, 2, v141")
    k.I("v_and_b32 v64, 3, v0")
    k.I("v_add_u32 v141, v141, v64")
    k.I("v_mul_u32_u24 v141, %d, v141" % QS2)
    k.I("v_bfe_u32 v64, v0, 2, 5")
    k.I("v_lshl_add_u32 v141, v64, 4, v141")
    k.I("v_add_u32 v141, %d, v141" % RED)
    k.I("v_mov_b32 v68, 0")
    k.I("v_mov_b32 v69, 0")
    k.I("v_mov_b32 v70, 0")
    k.I("v_mov_b32 v71, 0")
    k.I("v_lshrrev_b32 v66, 2, v0")
    k.I("v_mul_u32_u24 v66, 4160, v66")
    k.I("v_and_b32 v67, 3, v0")
    k.I("v_lshl_add_u32 v66, v67, 4, v66")
    k.I("v_cmp_gt_u32 vcc, 32, v0")
    k.I("s_and_saveexec_b64 s[12:13], vcc")
    k.LG("ds_write_b128 v66, v[68:71] offset:%d" % (UC + 4096))
    k.I("s_mov_b64 exec, s[12:13]")
    k.wait_vm("u")
    k.stamp(1)
    for c in range(8):
        if c % 2 == 0:
            src = 8 + c // 2
            if src % 2 == 0:
                k.LG("ds_write_b128 v3, v[%d:%d] offset:%d" % (src, src + 3, UC + c * 4160))
            else:
                for i in range(4):
                    k.I("v_mov_b32 v%d, v%d" % (72 + i, src + i))
                k.LG("ds_write_b128 v3, v[72:75] offset:%d" % (UC + c * 4160))
        else:
            b = 8 + (c - 1) // 2
            o = 76 + 4 * ((c // 2) % 2)
            for i in range(4):
                k.I("v_alignbyte_b32 v%d, v%d, v%d, 2" % (o + i, b + i + 1, b + i))
            k.LG("ds_write_b128 v3, v[%d:%d] offset:%d" % (o, o + 3, UC + c * 4160))
    k.wait_vm("kt")
    k.LG("ds_write_b128 v3, v[16:19] offset:%d" % KTB)
    k.I("v_cmp_gt_u32 vcc, 224, v0")
    k.I("s_and_saveexec_b64 s[12:13], vcc")
    k.LG("ds_write_b128 v3, v[20:23] offset:%d" % (KTB + 4096))
    k.I("s_mov_b64 exec, s[12:13]")
    k.I("v_and_b32 v64, 7, v2")
    k.I("v_sub_u32 v64, 7, v64")
    k.I("v_mul_u32_u24 v64, 4160, v64")
    k.I("v_lshrrev_b32 v65, 5, v2")
    k.I("v_bfe_u32 v66, v2, 3, 2")
    k.I("v_sub_u32 v66, v65, v66")
    k.I("s_lshl_b32 s14, s4, 1")
    k.I("s_sub_u32 s14, 9, s14")
    k.I("v_add_u32 v66, s14, v66")
    k.I("v_lshl_add_u32 v4, v66, 4, v64")
    k.I("s_lshr_b32 s14, s4, 1")
    k.I("s_sub_u32 s14, 1, s14")
    k.I("s_mul_i32 s14, s14, 80")
    k.I("s_and_b32 s15, s4, 1")
    k.I("s_xor_b32 s15, s15, 1")
    k.I("s_lshl_b32 s15, s15, 5")
    k.I("s_add_u32 s14, s14, s15")
    k.I("s_add_u32 s14, s14, %d" % KTB)
    k.I("v_and_b32 v64, 31, v2")
    k.I("v_mul_u32_u24 v64, 80, v64")
    k.I("v_lshl_add_u32 v64, v65, 4, v64")
    k.I("v_add_u32 v5, s14, v64")
    k.I("s_waitcnt lgkmcnt(0)")
    k.I("s_barrier")
    ACC0, ACC1, BUF = 32, 48, 72
    k.stamp(2)

    def issue(jj):
        b = BUF + 16 * (jj % 3)
        k.LG("ds_read_b128 v[%d:%d], v4 offset:%d" % (b, b + 3, (31 - jj) * 128))
        k.LG("ds_read_b128 v[%d:%d], v5 offset:%d" % (b + 8, b + 11, (31 - jj) * 160))
        k.LG("ds_read_b128 v[%d:%d], v4 offset:%d" % (b + 4, b + 7, (15 - jj) * 128))
        k.LG("ds_read_b128 v[%d:%d], v5 offset:%d" % (b + 12, b + 15, (15 - jj) * 160), ("it", jj))

    issue(0)
    issue(1)
    for jj in range(16):
        if jj + 2 < 16:
            issue(jj + 2)
        k.wait_lg(("it", jj))
        b = BUF + 16 * (jj % 3)
        c0 = "0" if jj == 0 else "v[%d:%d]" % (ACC0, ACC0 + 15)
        c1 = "0" if jj == 0 else "v[%d:%d]" % (ACC1, ACC1 + 15)
        k.I("v_mfma_f32_32x32x16_f16 v[%d:%d], v[%d:%d], v[%d:%d], %s" % (ACC1, ACC1 + 15, b, b + 3, b + 8, b + 11, c1))
        k.I("v_mfma_f32_32x32x16_f16 v[%d:%d], v[%d:%d], v[%d:%d], %s" % (ACC0, ACC0 + 15, b, b + 3, b + 12, b + 15, c0))
        k.I("v_mfma_f32_32x32x16_f16 v[%d:%d], v[%d:%d], v[%d:%d], v[%d:%d]" % (ACC1, ACC1 + 15, b + 4, b + 7, b + 12, b + 15, ACC1, ACC1 + 15))
    k.stamp(3)
    k.I("s_mul_i32 s14, s4, %d" % (8 * QS2))
    k.I("s_add_u32 s14, s14, %d" % RED)
    k.I("v_lshlrev_b32 v64, 4, v2")
    k.I("v_add_u32 v65, s14, v64")
    for t in range(2):
        for q in range(4):
            a = (ACC0 if t == 0 else ACC1) + 4 * q
            k.LG("ds_write_b128 v65, v[%d:%d] offset:%d" % (a, a + 3, (4 * t + q) * QS2))
    k.I("s_waitcnt lgkmcnt(0)")
    k.I("s_barrier")
    R = 72
    k.stamp(4)
    k.LG("ds_read_b128 v[132:135], v140", "uw")
    for w in range(4):
        for hh in range(2):
            r = R + 8 * w + 4 * hh
            k.LG("ds_read_b128 v[%d:%d], v141 offset:%d" % (r, r + 3, w * 8 * QS2 + hh * 512))
    k.I("s_and_b32 s17, s2, 1")
    k.I("s_lshl_b32 s17, s17, 4")
    k.I("s_lshr_b32 s16, s16, s17")
    k.I("s_lshl_b32 s16, s16, 16")
    k.wait_lg("uw")
    WV = 32
    for p in range(4):
        ur = 135 - p
        k.I("v_fma_mix_f32 v%d, v%d, s16, 0 op_sel:[1,0,0] op_sel_hi:[1,0,0]" % (WV + 2 * p, ur))
        k.I("v_fma_mix_f32 v%d, v%d, s16, 0 op_sel:[0,0,0] op_sel_hi:[1,0,0]" % (WV + 2 * p + 1, ur))
    for p in range(4):
        k.I("v_cvt_pk_bf16_f32 v%d, v%d, v%d" % (28 + p, WV + 2 * p, WV + 2 * p + 1))
    for p in range(4):
        k.I("v_lshlrev_b32 v%d, 16, v%d" % (WV + 2 * p, 28 + p))
        k.I("v_and_b32 v%d, 0xffff0000, v%d" % (WV + 2 * p + 1, 28 + p))
    k.wait_vm("ep")
    XV = 48
    for p in range(4):
        k.I("v_lshlrev_b32 v%d, 16, v%d" % (XV + 2 * p, 24 + p))
        k.I("v_and_b32 v%d, 0xffff0000, v%d" % (XV + 2 * p + 1, 24 + p))
    k.I("s_waitcnt lgkmcnt(0)")
    k.stamp(5)
    k.I("v_mov_b32 v64, s10")
    k.sched_begin()
    r = R
    for i in range(8):
        k.I("v_add_f32 v%d, v%d, v%d" % (r + i, r + i, r + 8 + i))
        k.I("v_add_f32 v%d, v%d, v%d" % (r + 16 + i, r + 16 + i, r + 24 + i))
    for i in range(8):
        k.I("v_add_f32 v%d, v%d, v%d" % (r + i, r + i, r + 16 + i))
    for i in range(8):
        k.I("v_mul_f32 v%d, v64, v%d" % (r + i, r + i))
    for p in range(4):
        x, y = r + 2 * p, r + 2 * p + 1
        t0 = r + 8 + p
        k.I("v_cvt_pk_bf16_f32 v%d, v%d, v%d" % (t0, x, y))
        k.I("v_lshlrev_b32 v%d, 16, v%d" % (x, t0))
        k.I("v_and_b32 v%d, 0xffff0000, v%d" % (y, t0))
        k.I("v_add_f32 v%d, v%d, v%d" % (x, x, WV + 2 * p))
        k.I("v_add_f32 v%d, v%d, v%d" % (y, y, WV + 2 * p + 1))
        k.I("v_cvt_pk_bf16_f32 v%d, v%d, v%d" % (t0, x, y))
        k.I("v_lshlrev_b32 v%d, 16, v%d" % (x, t0))
        k.I("v_and_b32 v%d, 0xffff0000, v%d" % (y, t0))
        k.I("v_add_f32 v%d, v%d, v%d" % (x, x, XV + 2 * p))
        k.I("v_add_f32 v%d, v%d, v%d" % (y, y, XV + 2 * p + 1))
        k.I("v_cvt_pk_bf16_f32 v%d, v%d, v%d" % (r + 16 + p, x, y))
    k.sched_end()
    k.VM("global_store_dwordx4 v7, v[%d:%d], s[40:41]" % (r + 16, r + 19))
    k.stamp_out(6, "s[40:41]", base=0x1F00000)
    k.I("K2_exit:")
    k.I("s_endpgm")
    return k
```

```python
from asmlib import *
from gen_k1 import *

K3_WGS = 224
K3_BLOCK = 512
ST = 114688
K3_LDS = ST + 4096
GK1 = -2.0 * 0.7978845608028654 * L2E
GK2 = GK1 * 0.044715


def gen_k3():
    k = Kern("k3_gemm1_kernel")
    k.I("s_cmp_ge_u32 s2, %d" % K3_WGS)
    k.I("s_cbranch_scc1 K3_exit")
    k.stamp(0)
    k.I("s_load_dwordx2 s[40:41], s[0:1], 112")
    k.I("s_load_dwordx2 s[34:35], s[0:1], 72")
    k.I("v_lshrrev_b32 v1, 6, v0")
    k.I("v_and_b32 v2, 63, v0")
    k.I("v_readfirstlane_b32 s4, v1")
    k.I("s_and_b32 s5, s2, 7")
    k.I("s_lshr_b32 s6, s2, 3")
    k.I("s_mul_i32 s7, s6, 37")
    k.I("s_lshr_b32 s7, s7, 8")
    k.I("s_mul_i32 s8, s7, 7")
    k.I("s_sub_u32 s6, s6, s8")
    k.I("s_and_b32 s8, s5, 1")
    k.I("s_mul_i32 s8, s8, 7")
    k.I("s_add_u32 s6, s6, s8")
    k.I("s_lshr_b32 s5, s5, 1")
    k.I("s_lshl_b32 s5, s5, 2")
    k.I("s_add_u32 s5, s5, s7")
    k.I("s_and_b32 s7, s4, 3")
    k.I("s_lshl_b32 s9, s6, 2")
    k.I("s_add_u32 s9, s9, s7")
    k.I("s_lshr_b32 s8, s4, 2")
    k.I("s_lshl_b32 s8, s8, 1")
    k.I("s_and_b32 s10, s4, 1")
    k.I("s_add_u32 s10, s10, s8")
    k.I("s_xor_b32 s11, s10, 1")
    k.I("s_bfe_u32 s18, s4, 0x10001")
    for i in range(7):
        k.I("s_mov_b32 s%d, %d" % (48 + i, 4096 * i))
    k.I("v_lshrrev_b32 v3, 4, v2")
    k.I("v_bfe_u32 v4, v2, 2, 2")
    k.I("v_xor_b32 v4, v4, v3")
    k.I("v_mul_u32_u24 v5, %d, v3" % HP)
    k.I("v_lshl_add_u32 v5, v4, 6, v5")
    k.I("v_and_b32 v4, 3, v2")
    k.I("v_lshl_add_u32 v5, v4, 4, v5")
    k.I("s_lshl_b32 s12, s5, 8")
    k.I("s_add_u32 s12, s12, %d" % HT_OFF)
    k.I("v_add_u32 v5, s12, v5")
    k.I("s_mul_i32 s12, s9, 28672")
    k.I("s_add_u32 s12, s12, %d" % W1F_OFF)
    k.I("v_lshlrev_b32 v6, 4, v2")
    k.I("v_add_u32 v6, s12, v6")
    k.I("s_waitcnt lgkmcnt(0)")
    k.I("s_mov_b32 s44, s40")
    k.I("s_and_b32 s45, s41, 0xffff")
    k.I("s_mov_b32 s46, %d" % WS_USED)
    k.I("s_mov_b32 s47, 0x00020000")
    k.I("s_lshl_b32 s13, s4, 10")
    k.I("s_mul_i32 s14, s4, %d" % (4 * HP))
    ACC, AR, BR, CSR, B1R = 16, 48, 96, 120, 136
    AD = 12

    def dma(i):
        k.I("s_mov_b32 m0, s13")
        k.VM("buffer_load_dwordx4 v5, s[44:47], s14 offen lds", ("dma", i))
        k.I("s_add_u32 s13, s13, 8192")
        k.I("s_add_u32 s14, s14, %d" % (32 * HP))

    def loadA(ks):
        r = AR + 4 * (ks % AD)
        so = "s%d" % (48 + ks // 4)
        k.VM("buffer_load_dwordx4 v[%d:%d], v6, s[44:47], %s offen offset:%d" % (r, r + 3, so, 1024 * (ks % 4)), ("A", ks))

    for i in range(6):
        dma(i)
        loadA(2 * i)
        loadA(2 * i + 1)
    for i in range(6, 14):
        dma(i)
    k.I("v_lshrrev_b32 v8, 5, v2")
    k.I("s_lshl_b32 s12, s9, 7")
    k.I("s_add_u32 s12, s12, %d" % CS_OFF)
    k.I("v_lshl_add_u32 v9, v8, 4, s12")
    for q in range(4):
        r = CSR + 4 * q
        k.VM("buffer_load_dwordx4 v[%d:%d], v9, s[44:47], 0 offen offset:%d" % (r, r + 3, 32 * q))
    k.I("s_lshl_b32 s12, s9, 6")
    k.I("v_lshl_add_u32 v10, v8, 3, s12")
    for q in range(4):
        r = B1R + 2 * q
        k.VM("global_load_dwordx2 v[%d:%d], v10, s[34:35] offset:%d" % (r, r + 1, 16 * q), "consts")
    k.I("v_lshrrev_b32 v3, 5, v2")
    k.I("v_bfe_u32 v4, v2, 2, 2")
    k.I("v_lshl_add_u32 v11, v3, 2, v4")
    k.I("v_lshlrev_b32 v11, 8, v11")
    k.I("v_bfe_u32 v12, v2, 4, 1")
    k.I("v_lshl_add_u32 v11, v12, 5, v11")
    k.I("v_and_b32 v12, 3, v2")
    k.I("v_lshl_add_u32 v11, v12, 3, v11")
    BA = 144
    for b in range(2):
        k.I("v_xor_b32 v12, s%d, v4" % (10 + b))
        k.I("v_lshl_add_u32 v%d, v12, 6, v11" % (BA + b))
        k.I("v_add_u32 v%d, 57344, v%d" % (BA + 2 + b, BA + b))
    SA = 148
    for i in range(4):
        k.I("v_mov_b32 v%d, 0" % (SA + i))
    k.I("s_cmp_eq_u32 s18, 1")
    k.I("s_cselect_b64 vcc, -1, 0")

    def readB(ks):
        r = BR + 8 * (ks % 3)
        ab = BA if ks < 14 else BA + 2
        off = (ks % 14) * 4096
        for b in range(2):
            k.LG("ds_read_b64_tr_b16 v[%d:%d], v%d offset:%d" % (r + 4 * b, r + 4 * b + 1, ab + b, off))
            k.LG("ds_read_b64_tr_b16 v[%d:%d], v%d offset:%d" % (r + 4 * b + 2, r + 4 * b + 3, ab + b, off + 2048),
                 ("B", ks, b))

    segs = {0: 0, 2: 1, 4: 3, 8: 5, 12: 7, 16: 10, 22: 13}
    starts = sorted(segs)
    for ks in range(28):
        nxt = [s_ for s_ in starts if s_ > ks]
        seg_end = nxt[0] if nxt else 28
        if ks in segs:
            k.wait_vm(("dma", segs[ks]))
            k.I("s_barrier")
            if ks in (0, 8, 16, 22):
                k.stamp(1 + (0, 8, 16, 22).index(ks))
            readB(ks)
        if ks + 1 < seg_end:
            readB(ks + 1)
        k.wait_vm(("A", ks))
        ar = AR + 4 * (ks % AD)
        br = BR + 8 * (ks % 3)
        for b in range(2):
            k.wait_lg(("B", ks, b))
            c = ACC + 16 * b
            cs = "0" if ks == 0 else "v[%d:%d]" % (c, c + 15)
            k.I("v_mfma_f32_32x32x16_bf16 v[%d:%d], v[%d:%d], v[%d:%d], %s" %
                (c, c + 15, ar, ar + 3, br + 4 * b, br + 4 * b + 3, cs))
            k.I("%s K3_s%d_%d" % ("s_cbranch_vccnz" if ks % 2 == 0 else "s_cbranch_vccz", ks, b))
            for j in range(2):
                t0 = SA + 4 + 2 * j
                k.I("v_lshlrev_b32 v%d, 16, v%d" % (t0, br + 2 * b + j))
                k.I("v_and_b32 v%d, 0xffff0000, v%d" % (t0 + 1, br + 2 * b + j))
            for j in range(2):
                t0 = SA + 4 + 2 * j
                k.I("v_add_f32 v%d, v%d, v%d" % (SA, SA, t0))
                k.I("v_fmac_f32 v%d, v%d, v%d" % (SA + 1, t0, t0))
                k.I("v_add_f32 v%d, v%d, v%d" % (SA + 2, SA + 2, t0 + 1))
                k.I("v_fmac_f32 v%d, v%d, v%d" % (SA + 3, t0 + 1, t0 + 1))
            k.I("K3_s%d_%d:" % (ks, b))
        if ks + AD < 28:
            loadA(ks + AD)
    k.stamp(5)
    k.I("s_lshl_b32 s12, s10, 1")
    k.I("s_add_u32 s12, s12, s18")
    k.I("s_lshl_b32 s12, s12, 9")
    k.I("v_lshl_add_u32 v3, v2, 3, s12")
    k.I("v_add_u32 v3, %d, v3" % ST)
    k.I("v_add_f32 v%d, v%d, v%d" % (SA, SA, SA + 2))
    k.I("v_add_f32 v%d, v%d, v%d" % (SA + 1, SA + 1, SA + 3))
    k.LG("ds_write_b64 v3, v[%d:%d]" % (SA, SA + 1))
    k.I("v_and_b32 v4, 31, v2")
    k.I("v_lshlrev_b32 v4, 3, v4")
    for b in range(2):
        k.I("s_lshl_b32 s12, s%d, 10" % (10 + b))
        k.I("s_add_u32 s12, s12, %d" % ST)
        k.I("v_add_u32 v%d, s12, v4" % (BA + b))
    k.I("s_waitcnt lgkmcnt(0)")
    k.I("s_barrier")
    SR = 96
    for b in range(2):
        k.LG("ds_read2_b64 v[%d:%d], v%d offset0:0 offset1:32" % (SR + 8 * b, SR + 8 * b + 3, BA + b))
        k.LG("ds_read2_b64 v[%d:%d], v%d offset0:64 offset1:96" % (SR + 8 * b + 4, SR + 8 * b + 7, BA + b), "st")
    k.wait_lg("st")
    NR = 112
    k.sched_begin()
    for b in range(2):
        s = SR + 8 * b
        k.I("v_add_f32 v%d, v%d, v%d" % (s, s, s + 2))
        k.I("v_add_f32 v%d, v%d, v%d" % (s + 1, s + 1, s + 3))
        k.I("v_add_f32 v%d, v%d, v%d" % (s + 4, s + 4, s + 6))
        k.I("v_add_f32 v%d, v%d, v%d" % (s + 5, s + 5, s + 7))
        k.I("v_add_f32 v%d, v%d, v%d" % (s, s, s + 4))
        k.I("v_add_f32 v%d, v%d, v%d" % (s + 1, s + 1, s + 5))
        k.I("v_mul_f32 v%d, %s, v%d" % (s, f32hex(1.0 / 448), s))
        k.I("v_mul_f32 v%d, %s, v%d" % (s + 1, f32hex(1.0 / 448), s + 1))
        k.I("v_fma_f32 v%d, -v%d, v%d, v%d" % (s + 1, s, s, s + 1))
        k.I("v_max_f32 v%d, 0, v%d" % (s + 1, s + 1))
        k.I("v_cvt_pk_bf16_f32 v%d, v%d, -v%d" % (s + 2, s + 1, s))
        k.I("v_and_b32 v%d, 0xffff0000, v%d" % (NR + 2 * b, s + 2))
        k.I("v_lshlrev_b32 v%d, 16, v%d" % (s + 2, s + 2))
        k.I("v_add_f32 v%d, %s, v%d" % (s + 2, f32hex(1e-5), s + 2))
        k.I("v_cvt_pk_bf16_f32 v%d, v%d, v%d" % (s + 2, s + 2, s + 2))
        k.I("v_lshlrev_b32 v%d, 16, v%d" % (s + 2, s + 2))
        k.I("v_sqrt_f32 v%d, v%d" % (s + 2, s + 2))
        k.I("v_cvt_pk_bf16_f32 v%d, v%d, v%d" % (s + 2, s + 2, s + 2))
        k.I("v_lshlrev_b32 v%d, 16, v%d" % (s + 2, s + 2))
        k.I("v_rcp_f32 v%d, v%d" % (NR + 2 * b + 1, s + 2))
    k.sched_end()
    k.wait_vm("consts")
    k.I("v_lshlrev_b32 v3, 4, v2")
    for b in range(2):
        k.I("s_lshl_b32 s13, s5, 2")
        k.I("s_add_u32 s12, s%d, s13" % (10 + b))
        k.I("s_mul_i32 s12, s12, 112")
        k.I("s_lshl_b32 s13, s9, 1")
        k.I("s_add_u32 s12, s12, s13")
        k.I("s_lshl_b32 s12, s12, 10")
        k.I("s_add_u32 s12, s12, %d" % HF_OFF)
        k.I("v_add_u32 v%d, s12, v3" % (BA + b))
    k.I("s_mov_b32 s16, 0x00003f80")
    k.I("s_mov_b32 s17, 0x3f800000")
    KK, ONE = 116, 118
    k.I("v_mov_b32 v%d, %s" % (KK, f32hex(GK1)))
    k.I("v_mov_b32 v%d, %s" % (KK + 1, f32hex(GK2)))
    k.I("v_mov_b32 v%d, 1.0" % ONE)
    k.I("v_mov_b32 v%d, 1.0" % (ONE + 1))
    k.stamp(6)
    B1F = 48
    for q in range(4):
        for p in range(2):
            k.I("v_lshlrev_b32 v%d, 16, v%d" % (B1F + 4 * q + 2 * p, B1R + 2 * q + p))
            k.I("v_and_b32 v%d, 0xffff0000, v%d" % (B1F + 4 * q + 2 * p + 1, B1R + 2 * q + p))
    OUT = 152
    TT = 64
    P = lambda r: "v[%d:%d]" % (r, r + 1)
    for b in range(2):
        c = ACC + 16 * b
        nr = NR + 2 * b
        k.sched_begin()
        for j in range(2):
            o = OUT + 4 * (2 * b + j)
            T = TT + 16 * j
            for r in range(8 * j, 8 * j + 8, 2):
                x = c + r
                t = T + 2 * ((r % 8) // 2)
                t2 = T + 8 + 2 * ((r % 8) // 2)
                k.I("v_pk_fma_f32 %s, %s, %s, %s op_sel:[0,0,0] op_sel_hi:[1,0,1]" % (P(x), P(CSR + r), P(nr), P(x)))
                k.I("v_pk_mul_f32 %s, %s, %s op_sel:[0,1] op_sel_hi:[1,1]" % (P(x), P(x), P(nr)))
                k.I("v_cvt_pk_bf16_f32 v%d, v%d, v%d" % (t, x, x + 1))
                k.I("v_dot2_f32_bf16 v%d, v%d, s16, v%d" % (x, t, B1F + r))
                k.I("v_dot2_f32_bf16 v%d, v%d, s17, v%d" % (x + 1, t, B1F + r + 1))
                k.I("v_cvt_pk_bf16_f32 v%d, v%d, v%d" % (t, x, x + 1))
                k.I("v_lshlrev_b32 v%d, 16, v%d" % (x, t))
                k.I("v_and_b32 v%d, 0xffff0000, v%d" % (x + 1, t))
                k.I("v_pk_mul_f32 %s, %s, %s" % (P(t), P(x), P(x)))
                k.I("v_pk_fma_f32 %s, %s, %s, %s op_sel:[0,1,0] op_sel_hi:[1,1,0]" % (P(t), P(t), P(KK), P(KK)))
                k.I("v_pk_mul_f32 %s, %s, %s" % (P(t), P(t), P(x)))
                k.I("v_exp_f32 v%d, v%d" % (t2, t))
                k.I("v_exp_f32 v%d, v%d" % (t2 + 1, t + 1))
                k.I("v_pk_add_f32 %s, %s, %s" % (P(t2), P(t2), P(ONE)))
                k.I("v_rcp_f32 v%d, v%d" % (t, t2))
                k.I("v_rcp_f32 v%d, v%d" % (t + 1, t2 + 1))
                k.I("v_pk_mul_f32 %s, %s, %s" % (P(x), P(x), P(t)))
                k.I("v_cvt_pk_bf16_f32 v%d, v%d, v%d" % (o + (r % 8) // 2, x, x + 1))
        k.sched_end()
        for j in range(2):
            o = OUT + 4 * (2 * b + j)
            k.VM("global_store_dwordx4 v%d, v[%d:%d], s[40:41] offset:%d" % (BA + b, o, o + 3, 1024 * j))
    k.stamp_out(7, "s[40:41]", base=0x1E00000)
    k.I("K3_exit:")
    k.I("s_endpgm")
    return k
```

```python
from asmlib import *
from gen_k1 import *

K4_WGS = 224
QS, TS = 1056, 4416
WS_ = 4 * TS
K4_LDS = 4 * WS_


def gen_k4():
    k = Kern("k4_gemm2_kernel")
    k.I("s_cmp_ge_u32 s2, %d" % K4_WGS)
    k.I("s_cbranch_scc1 K4_exit")
    k.stamp(0)
    k.I("s_load_dwordx2 s[40:41], s[0:1], 112")
    k.I("s_load_dwordx4 s[36:39], s[0:1], 88")
    k.I("v_lshrrev_b32 v1, 6, v0")
    k.I("v_and_b32 v2, 63, v0")
    k.I("v_readfirstlane_b32 s4, v1")
    k.I("s_and_b32 s5, s2, 7")
    k.I("s_lshr_b32 s6, s2, 3")
    k.I("s_mul_i32 s7, s6, 37")
    k.I("s_lshr_b32 s7, s7, 8")
    k.I("s_lshl_b32 s5, s5, 2")
    k.I("s_add_u32 s5, s5, s7")
    k.I("s_mul_i32 s7, s7, 7")
    k.I("s_sub_u32 s6, s6, s7")
    for i in range(7):
        k.I("s_mov_b32 s%d, %d" % (48 + i, 4096 * i))
    k.I("s_mul_i32 s8, s6, 224")
    k.I("s_mul_i32 s9, s4, 28")
    k.I("s_add_u32 s8, s8, s9")
    k.I("s_lshl_b32 s8, s8, 10")
    k.I("s_add_u32 s8, s8, %d" % W2F_OFF)
    k.I("s_mul_i32 s10, s5, 224")
    k.I("s_add_u32 s10, s10, s9")
    k.I("s_lshl_b32 s10, s10, 10")
    k.I("s_add_u32 s10, s10, %d" % HF_OFF)
    k.I("v_lshlrev_b32 v3, 4, v2")
    k.I("v_add_u32 v4, s8, v3")
    k.I("v_add_u32 v5, %d, v4" % (112 * 1024))
    k.I("v_add_u32 v6, s10, v3")
    k.I("v_add_u32 v7, %d, v6" % (112 * 1024))
    k.I("s_waitcnt lgkmcnt(0)")
    k.I("s_mov_b32 s44, s40")
    k.I("s_and_b32 s45, s41, 0xffff")
    k.I("s_mov_b32 s46, %d" % WS_USED)
    k.I("s_mov_b32 s47, 0x00020000")
    ACC, RING, HR, B2R = 16, 80, 208, 224
    DEPTH = 8

    def load(ks):
        r = RING + 16 * (ks % DEPTH)
        so = "s%d" % (48 + ks // 4)
        for i, va in enumerate((4, 5, 6, 7)):
            k.VM("buffer_load_dwordx4 v[%d:%d], v%d, s[44:47], %s offen offset:%d" %
                 (r + 4 * i, r + 4 * i + 3, va, so, 1024 * (ks % 4)), ("L", ks) if i == 3 else None)

    for ks in range(DEPTH):
        load(ks)
    k.I("s_lshl_b32 s11, s6, 6")
    k.I("s_lshl_b32 s12, s5, 6")
    k.I("v_and_b32 v8, 7, v0")
    k.I("v_lshl_add_u32 v9, v8, 3, s11")
    k.I("v_lshrrev_b32 v10, 3, v0")
    k.I("v_add_u32 v10, s12, v10")
    k.I("v_mul_u32_u24 v11, %d, v9" % HP)
    k.I("v_lshl_add_u32 v11, v10, 1, v11")
    k.I("v_add_u32 v11, %d, v11" % HT_OFF)
    k.I("v_lshlrev_b32 v12, 1, v9")
    k.I("v_mul_u32_u24 v13, 896, v10")
    k.I("v_lshl_add_u32 v13, v9, 1, v13")
    k.I("v_add_u32 v240, %d, v13" % (32 * 896))
    k.VM("global_load_dword v242, v13, s[38:39]")
    k.VM("global_load_dword v243, v240, s[38:39]")
    for i in range(8):
        k.I("v_add_u32 v14, %d, v11" % (i * HP))
        k.VM("global_load_ushort v%d, v14, s[40:41]" % (HR + i))
        k.VM("global_load_ushort v%d, v14, s[40:41] offset:64" % (HR + 8 + i))
    k.VM("global_load_dwordx4 v[%d:%d], v12, s[36:37]" % (B2R, B2R + 3), "ep")
    k.I("v_lshrrev_b32 v14, 2, v8")
    k.I("v_mul_u32_u24 v14, %d, v14" % (2 * TS))
    k.I("v_and_b32 v15, 3, v8")
    k.I("v_mul_u32_u24 v15, %d, v15" % QS)
    k.I("v_lshrrev_b32 v241, 3, v0")
    k.I("v_lshlrev_b32 v241, 4, v241")
    k.I("v_add3_u32 v241, v241, v14, v15")
    for ks in range(28):
        k.wait_vm(("L", ks))
        if ks % 7 == 0:
            k.stamp(1 + ks // 7)
        r = RING + 16 * (ks % DEPTH)
        for a in range(2):
            for b in range(2):
                c = ACC + 16 * (2 * a + b)
                cs = "0" if ks == 0 else "v[%d:%d]" % (c, c + 15)
                k.I("v_mfma_f32_32x32x16_bf16 v[%d:%d], v[%d:%d], v[%d:%d], %s" %
                    (c, c + 15, r + 4 * a, r + 4 * a + 3, r + 8 + 4 * b, r + 8 + 4 * b + 3, cs))
        if ks + DEPTH < 28:
            load(ks + DEPTH)
    k.stamp(5)
    k.I("s_mul_i32 s14, s4, %d" % WS_)
    k.I("v_add_u32 v14, s14, v3")
    for t in range(4):
        for q in range(4):
            a = ACC + 16 * t + 4 * q
            k.LG("ds_write_b128 v14, v[%d:%d] offset:%d" % (a, a + 3, t * TS + q * QS))
    k.I("s_waitcnt lgkmcnt(0)")
    k.I("s_barrier")
    R = 80
    for b in range(2):
        for w in range(4):
            for hh in range(2):
                r = R + 32 * b + 8 * w + 4 * hh
                k.LG("ds_read_b128 v[%d:%d], v241 offset:%d" % (r, r + 3, w * WS_ + b * TS + hh * 512), ("r", b))
    k.wait_vm("ep")
    for i in range(4):
        k.I("v_lshlrev_b32 v%d, 16, v%d" % (16 + 2 * i, B2R + i))
        k.I("v_and_b32 v%d, 0xffff0000, v%d" % (17 + 2 * i, B2R + i))
    for i in range(16):
        k.I("v_lshlrev_b32 v%d, 16, v%d" % (HR + i, HR + i))
    k.stamp(6)
    for b in range(2):
        r = R + 32 * b
        k.wait_lg(("r", b))
        k.sched_begin()
        for i in range(8):
            k.I("v_add_f32 v%d, v%d, v%d" % (r + i, r + i, r + 8 + i))
            k.I("v_add_f32 v%d, v%d, v%d" % (r + 16 + i, r + 16 + i, r + 24 + i))
        for i in range(8):
            k.I("v_add_f32 v%d, v%d, v%d" % (r + i, r + i, r + 16 + i))
        for p in range(4):
            x, y = r + 2 * p, r + 2 * p + 1
            t0 = r + 8 + p
            k.I("v_cvt_pk_bf16_f32 v%d, v%d, v%d" % (t0, x, y))
            k.I("v_lshlrev_b32 v%d, 16, v%d" % (x, t0))
            k.I("v_and_b32 v%d, 0xffff0000, v%d" % (y, t0))
            k.I("v_add_f32 v%d, v%d, v%d" % (x, x, 16 + 2 * p))
            k.I("v_add_f32 v%d, v%d, v%d" % (y, y, 17 + 2 * p))
            k.I("v_cvt_pk_bf16_f32 v%d, v%d, v%d" % (t0, x, y))
            k.I("v_lshlrev_b32 v%d, 16, v%d" % (x, t0))
            k.I("v_and_b32 v%d, 0xffff0000, v%d" % (y, t0))
            k.I("v_add_f32 v%d, v%d, v%d" % (x, x, HR + 8 * b + 2 * p))
            k.I("v_add_f32 v%d, v%d, v%d" % (y, y, HR + 8 * b + 2 * p + 1))
            k.I("v_cvt_pk_bf16_f32 v%d, v%d, v%d" % (r + 16 + p, x, y))
        k.sched_end()
        k.VM("global_store_dwordx4 v%d, v[%d:%d], s[38:39]" % (13 if b == 0 else 240, r + 16, r + 19))
    k.stamp_out(7, "s[40:41]", base=0x1E80000)
    k.I("K4_exit:")
    k.I("s_endpgm")
    return k
```

```python
from asmlib import *
import math, os

L_, D_, N_, F_ = 2048, 448, 256, 1792
UREV_OFF = 0
XT_OFF = 0x1D0000
KT_OFF = 0x570000
W1F_OFF = 0x8C0000
W2F_OFF = 0xA50000
CS_OFF = 0xBE0000
HT_OFF = 0xBF0000
HF_OFF = 0xDD0000
WS_USED = 0x14D0000
HP = 4352

UREV_PITCH = 4160
KT_PITCH = 7680

N_LN1, N_KGEN, N_WP, N_CS = 128, 448, 196, 28
K1_WGS = N_LN1 + N_KGEN + N_WP + N_CS
K1_LDS = 24576

L2E = 1.4426950408889634
L2E_HI = 47274.0 / 32768.0
L2E_LO = L2E - L2E_HI
LN2 = math.log(2.0)

P_U, P_LOGA, P_AIM, P_CR, P_CI, P_LOGDT, P_DSK, P_BX, P_W1, P_B1, P_W2, P_B2, P_WS = \
    16, 18, 20, 22, 24, 26, 28, 30, 32, 34, 36, 38, 40


def sp(p):
    return "s[%d:%d]" % (p, p + 1)


def dpp_reduce(k, op, regs):
    for mod in ("row_shr:1 row_mask:0xf bank_mask:0xf bound_ctrl:0",
                "row_shr:2 row_mask:0xf bank_mask:0xf bound_ctrl:0",
                "row_shr:4 row_mask:0xf bank_mask:0xf bound_ctrl:0",
                "row_shr:8 row_mask:0xf bank_mask:0xf bound_ctrl:0",
                "row_bcast:15 row_mask:0xa bank_mask:0xf",
                "row_bcast:31 row_mask:0xc bank_mask:0xf"):
        for r in regs:
            k.I("%s_dpp v%d, v%d, v%d %s" % (op, r, r, r, mod))


def exp_bf16(k, x, out, t0, t1):
    k.I("v_mul_f32 v%d, %s, v%d" % (t0, f32hex(L2E_HI), x))
    k.I("v_mul_f32 v%d, %s, v%d" % (t1, f32hex(L2E_LO * LN2), x))
    k.I("v_exp_f32 v%d, v%d" % (t0, t0))
    k.I("v_fma_f32 v%d, v%d, v%d, v%d" % (t0, t0, t1, t0))
    k.I("v_cvt_pk_bf16_f32 v%d, v%d, v%d" % (t0, t0, t0))
    k.I("v_lshlrev_b32 v%d, 16, v%d" % (out, t0))


def cmul(k, d, a, b, t):
    k.I("v_pk_mul_f32 v[%d:%d], v[%d:%d], v[%d:%d] op_sel_hi:[0,1]" % (t, t + 1, a, a + 1, b, b + 1))
    k.I("v_pk_fma_f32 v[%d:%d], v[%d:%d], v[%d:%d], v[%d:%d] op_sel:[1,1,0] op_sel_hi:[1,0,1] neg_lo:[1,0,0]" %
        (d, d + 1, a, a + 1, b, b + 1, t, t + 1))


def split(k, val, neg_im, hl, t):
    n = "-" if neg_im else ""
    k.I("v_cvt_pk_bf16_f32 v%d, v%d, %sv%d" % (hl, val, n, val + 1))
    k.I("v_lshlrev_b32 v%d, 16, v%d" % (t, hl))
    k.I("v_and_b32 v%d, 0xffff0000, v%d" % (t + 1, hl))
    k.I("v_pk_add_f32 v[%d:%d], v[%d:%d], v[%d:%d] neg_lo:[0,1] neg_hi:[%d,1]" % (t, t + 1, val, val + 1, t, t + 1, 1 if neg_im else 0))
    k.I("v_cvt_pk_bf16_f32 v%d, v%d, v%d" % (hl + 1, t, t + 1))


def role_kgen(k):
    WBS = 4352
    RP = 272
    MX = 4 * WBS
    k.I("K1_kgen:")
    k.stamp(0)
    k.I("s_sub_u32 s2, s2, %d" % N_LN1)
    k.I("s_lshl_b32 s3, s2, 9")
    k.I("v_lshlrev_b32 v1, 1, v0")
    k.I("v_add_u32 v1, s3, v1")
    k.I("s_lshl_b32 s4, s2, 1")
    k.I("v_mov_b32 v7, s4")
    k.I("s_waitcnt lgkmcnt(0)")
    k.VM("global_load_ushort v2, v1, %s" % sp(P_LOGA))
    k.VM("global_load_ushort v3, v1, %s" % sp(P_AIM))
    k.VM("global_load_ushort v4, v1, %s" % sp(P_CR))
    k.VM("global_load_ushort v5, v1, %s" % sp(P_CI))
    k.VM("global_load_ushort v6, v7, %s" % sp(P_LOGDT))
    k.I("v_lshrrev_b32 v46, 6, v0")
    k.I("v_mul_u32_u24 v46, %d, v46" % WBS)
    k.I("v_and_b32 v47, 63, v0")
    k.I("v_lshl_add_u32 v44, v47, 2, v46")
    k.I("v_and_b32 v8, 15, v0")
    k.I("v_mul_u32_u24 v8, %d, v8" % RP)
    k.I("v_lshrrev_b32 v9, 4, v47")
    k.I("v_lshlrev_b32 v9, 4, v9")
    k.I("v_add3_u32 v45, v46, v8, v9")
    k.I("v_lshrrev_b32 v20, 4, v47")
    k.I("v_and_b32 v21, 15, v47")
    k.I("v_lshrrev_b32 v22, 1, v20")
    k.I("v_lshlrev_b32 v22, 7, v22")
    k.I("v_and_b32 v23, 1, v20")
    k.I("v_lshl_add_u32 v22, v23, 2, v22")
    k.I("v_lshl_add_u32 v22, v21, 3, v22")
    k.I("v_lshl_add_u32 v100, v22, 2, v46")
    k.I("v_cmp_gt_u32 vcc, 2, v20")
    k.I("v_lshlrev_b32 v23, 6, v20")
    k.I("v_add_u32 v23, 256, v23")
    k.I("v_lshlrev_b32 v24, 2, v21")
    k.I("v_lshlrev_b32 v25, 1, v21")
    k.I("v_cndmask_b32 v24, v25, v24, vcc")
    k.I("v_add_u32 v23, v23, v24")
    k.I("v_cndmask_b32_e64 v25, 32, 2, vcc")
    k.I("v_add_u32 v24, v23, v25")
    k.I("v_lshl_add_u32 v101, v23, 2, v46")
    k.I("v_lshl_add_u32 v102, v24, 2, v46")
    k.I("v_lshl_add_u32 v25, v20, 6, v21")
    k.I("v_add_u32 v25, 512, v25")
    k.I("v_lshl_add_u32 v103, v25, 2, v46")
    IX = 104
    k.I("v_lshlrev_b32 v8, 3, v0")
    k.I("v_cmp_gt_u32 vcc, 16, v0")
    for i in range(0, 8, 2):
        a = IX + i
        k.I("v_add_u32 v%d, %d, v8" % (a, i))
        k.I("v_add_u32 v%d, %d, v8" % (a + 1, i + 1))
        k.I("v_cvt_f32_u32 v10, v%d" % a)
        k.I("v_cvt_f32_u32 v11, v%d" % (a + 1))
        k.I("v_cvt_pk_bf16_f32 v10, v10, v11")
        k.I("v_and_b32 v11, 0xffff, v10")
        k.I("v_lshrrev_b32 v10, 16, v10")
        k.I("v_subrev_u32 v11, 17024, v11")
        k.I("v_subrev_u32 v10, 17024, v10")
        k.I("v_cndmask_b32 v%d, v11, v%d, vcc" % (a, a))
        k.I("v_cndmask_b32 v%d, v10, v%d, vcc" % (a + 1, a + 1))
    for i in range(8):
        k.I("v_lshlrev_b32 v%d, 2, v%d" % (IX + i, IX + i))
    k.I("s_waitcnt vmcnt(0)")
    k.stamp(1)
    k.sched_begin()
    for r in (2, 3, 4, 5, 6):
        k.I("v_lshlrev_b32 v%d, 16, v%d" % (r, r))
    exp_bf16(k, 6, 6, 8, 9)
    exp_bf16(k, 2, 2, 12, 13)
    k.I("v_mul_f32 v10, v2, v6")
    k.I("v_mul_f32 v11, v3, v6")
    k.I("v_mul_f32 v4, v4, v6")
    k.I("v_mul_f32 v5, v5, v6")
    C0 = 34
    k.I("v_add_f32 v34, v4, v4")
    k.I("v_add_f32 v35, v5, v5")
    k.I("v_add_f32 v1, |v34|, |v35|")
    k.I("v_mul_f32 v10, %s, v10" % f32hex(-L2E))
    k.I("v_mul_f32 v11, %s, v11" % f32hex(1.0 / (2 * math.pi)))
    FE, FVB, GF, ACCR = 48, 64, 80, 2
    FV = lambda j: FVB + 2 * (j - 1)
    EE = lambda e: 20 + 2 * (e - 1)
    E128, E512, E516, E1024, E1536, E2048, E256 = 18, 14, 16, 18, 42, 96, 42
    for (p_, r, ta, tb) in ((1, EE(1), 8, 9), (8, FV(1), 12, 13), (128, E128, 42, 43)):
        k.I("v_mul_f32 v%d, %s, v10" % (ta, f32hex(float(p_))))
        k.I("v_mul_f32 v%d, %s, v11" % (tb, f32hex(float(p_))))
        k.I("v_exp_f32 v%d, v%d" % (ta, ta))
        k.I("v_fract_f32 v%d, v%d" % (tb, tb))
        k.I("v_cos_f32 v%d, v%d" % (r, tb))
        k.I("v_sin_f32 v%d, v%d" % (r + 1, tb))
        k.I("v_mul_f32 v%d, v%d, v%d" % (r, ta, r))
        k.I("v_mul_f32 v%d, v%d, v%d" % (r + 1, ta, r + 1))
    k.sched_end()
    dpp_reduce(k, "v_max_f32", [1])
    k.I("v_readlane_b32 s5, v1, 63")
    k.I("v_frexp_exp_i32_f32 v1, s5")
    k.I("v_mov_b32 v7, 100")
    k.I("v_min_i32 v1, v1, v7")
    k.I("v_mov_b32 v7, -100")
    k.I("v_max_i32 v1, v1, v7")
    k.I("v_sub_u32 v7, 0, v1")
    k.I("v_ldexp_f32 v34, v34, v7")
    k.I("v_ldexp_f32 v35, v35, v7")
    k.I("v_ldexp_f32 v98, 1.0, v1")
    k.I("v_lshrrev_b32 v7, 6, v0")
    k.I("v_lshlrev_b32 v7, 2, v7")
    k.LG("ds_write_b32 v7, v1 offset:%d" % MX)
    k.sched_begin()
    slot = [0]

    def SL():
        slot[0] += 1
        return 112 + 4 * (slot[0] % 4)

    def cm(d, a_, b_):
        cmul(k, d, a_, b_, SL() + 2)

    def row(ldsrow, src, mul, neg):
        sl = SL()
        val = src
        if mul is not None:
            val = sl
            cmul(k, val, src, mul, sl + 2)
        k.I("v_cvt_pk_f16_f32 v%d, v%d, %sv%d" % (sl + 2, val, "-" if neg else "", val + 1))
        k.LG("ds_write_b32 v44, v%d offset:%d" % (sl + 2, ldsrow * RP))

    for V in (FV, EE):
        cm(V(2), V(1), V(1))
        cm(V(3), V(2), V(1))
        cm(V(4), V(2), V(2))
        cm(V(5), V(4), V(1))
        cm(V(6), V(4), V(2))
        cm(V(7), V(4), V(3))
    cm(FV(8), FV(4), FV(4))
    cm(C0 + 2, C0, E128)
    cm(E256, E128, E128)
    cm(C0 + 4, C0, E256)
    cm(C0 + 6, C0 + 2, E256)
    cm(E512, E256, E256)
    cm(E516, E512, EE(4))
    cm(E1024, E512, E512)
    cm(E1536, E1024, E512)
    cm(E2048, E1024, E1024)
    sl = SL()
    k.I("v_mov_b32 v%d, 0x3c00" % (sl + 2))
    k.LG("ds_write_b32 v44, v%d" % (sl + 2))
    for j in range(1, 16):
        if j <= 8:
            row(j, FV(j), None, False)
        else:
            row(j, FV(8), FV(j - 8), False)
    for s_ in range(4):
        k.LG("ds_read_b128 v[%d:%d], v45 offset:%d" % (FE + 4 * s_, FE + 4 * s_ + 3, 64 * s_), "fe")

    def readG(g):
        for s_ in range(4):
            k.LG("ds_read_b128 v[%d:%d], v45 offset:%d" % (GF + 4 * s_, GF + 4 * s_ + 3, 64 * s_), ("g", g))

    def mfmas(g):
        a_ = ACCR + 4 * g
        for s_ in range(4):
            y = FE + 4 * s_
            c = "0" if s_ == 0 else "v[%d:%d]" % (a_, a_ + 3)
            k.I("v_mfma_f32_16x16x32_f16 v[%d:%d], v[%d:%d], v[%d:%d], %s" % (a_, a_ + 3, GF + 4 * s_, GF + 4 * s_ + 3, y, y + 3, c))

    for kk in range(2):
        for e in range(8):
            row(8 * kk + e, C0 + 2 * kk, EE(e) if e else None, True)
    readG(0)
    for kk in range(2):
        for e in range(4):
            row(4 * kk + e, C0 + 4 + 2 * kk, EE(2 * e) if e else None, True)
    k.sched_end()
    k.stamp(2)
    k.wait_lg(("g", 0))
    k.sched_begin()
    mfmas(0)
    for kk in range(4):
        row(8 + 2 * kk, C0 + 2 * kk, E512, True)
        row(8 + 2 * kk + 1, C0 + 2 * kk, E516, True)
    readG(1)
    for kk in range(4):
        row(kk, C0 + 2 * kk, E1024, True)
    for kk in range(4):
        row(4 + kk, C0 + 2 * kk, E1536, True)
    k.sched_end()
    k.wait_lg(("g", 1))
    k.sched_begin()
    mfmas(1)
    row(8, C0, E2048, True)
    readG(2)
    for r in range(4):
        k.I("v_mul_f32 v%d, v98, v%d" % (ACCR + r, ACCR + r))
    k.sched_end()
    k.wait_lg(("g", 2))
    mfmas(2)
    k.stamp(3)
    for r in range(4, 8):
        k.I("v_mul_f32 v%d, v98, v%d" % (ACCR + r, ACCR + r))
    k.LG("ds_write_b128 v100, v[%d:%d]" % (ACCR, ACCR + 3))
    k.LG("ds_write_b64 v101, v[%d:%d]" % (ACCR + 4, ACCR + 5))
    k.LG("ds_write_b64 v102, v[%d:%d]" % (ACCR + 6, ACCR + 7))
    for r in range(8, 12):
        k.I("v_mul_f32 v%d, v98, v%d" % (ACCR + r, ACCR + r))
    for r in range(4):
        k.LG("ds_write_b32 v103, v%d offset:%d" % (ACCR + 8 + r, 64 * r))
    k.I("s_mul_i32 s6, s2, %d" % KT_PITCH)
    k.I("s_add_u32 s6, s6, %d" % KT_OFF)
    k.I("v_lshrrev_b32 v8, 2, v0")
    k.I("v_mul_u32_u24 v8, 80, v8")
    k.I("v_and_b32 v9, 3, v0")
    k.I("v_lshl_add_u32 v8, v9, 4, v8")
    k.I("v_add_u32 v8, s6, v8")
    k.I("v_mov_b32 v3, 0")
    k.I("s_waitcnt lgkmcnt(0)")
    k.I("s_barrier")
    k.stamp(4)
    k.LG("ds_read_b128 v[4:7], v3 offset:%d" % MX, "mx")
    for i in range(8):
        for w in range(4):
            k.LG("ds_read_b32 v%d, v%d offset:%d" % (48 + 4 * i + w, IX + i, w * WBS), ("t", i))
    k.wait_lg("mx")
    k.I("v_max3_i32 v4, v4, v5, v6")
    k.I("v_max_i32 v5, v4, v7")
    k.I("v_sub_u32 v6, 7, v5")
    k.I("v_ldexp_f32 v6, 1.0, v6")
    k.I("v_subrev_u32 v7, 7, v5")
    k.I("v_ldexp_f32 v7, 1.0, v7")
    for i in range(8):
        b = 48 + 4 * i
        k.wait_lg(("t", i))
        k.I("v_add_f32 v%d, v%d, v%d" % (b, b, b + 1))
        k.I("v_add_f32 v%d, v%d, v%d" % (b + 2, b + 2, b + 3))
        k.I("v_add_f32 v%d, v%d, v%d" % (b, b, b + 2))
        k.I("v_mul_f32 v%d, v6, v%d" % (30 + i, b))
    for i in range(4):
        k.I("v_cvt_pk_f16_f32 v%d, v%d, v%d" % (40 + i, 30 + 2 * i, 31 + 2 * i))
    k.stamp(5)
    k.VM("global_store_dwordx4 v8, v[40:43], %s offset:%d" % (sp(P_WS), 31 * 80))
    k.I("v_mov_b32 v44, 0")
    k.I("v_mov_b32 v45, 0")
    k.I("v_mov_b32 v46, 0")
    k.I("v_mov_b32 v47, 0")
    k.I("v_lshlrev_b32 v9, 4, v0")
    k.I("v_add_u32 v9, s6, v9")
    k.I("s_mul_i32 s7, s2, %d" % UREV_PITCH)
    k.I("s_add_u32 s7, s7, %d" % (UREV_OFF + 4096 - 160 * 16))
    k.I("v_lshlrev_b32 v10, 4, v0")
    k.I("v_add_u32 v10, s7, v10")
    k.I("v_cmp_lt_u32 vcc, 159, v0")
    k.I("v_cndmask_b32 v9, v9, v10, vcc")
    k.I("s_mov_b64 s[8:9], vcc")
    k.I("v_cmp_gt_u32 vcc, 164, v0")
    k.I("s_and_b64 s[8:9], s[8:9], vcc")
    k.I("v_cmp_gt_u32 vcc, 155, v0")
    k.I("s_or_b64 vcc, vcc, s[8:9]")
    k.I("s_and_saveexec_b64 s[12:13], vcc")
    k.I("s_cbranch_execz K1_kg_s1")
    k.VM("global_store_dwordx4 v9, v[44:47], %s" % sp(P_WS))
    k.I("K1_kg_s1:")
    k.I("s_mov_b64 exec, s[12:13]")
    k.I("v_mov_b32 v9, s6")
    k.I("v_add_u32 v9, 7600, v9")
    k.I("v_cmp_eq_u32 vcc, 0, v0")
    k.I("s_and_saveexec_b64 s[12:13], vcc")
    k.I("s_cbranch_execz K1_kg_s2")
    k.VM("global_store_dword v9, v7, %s" % sp(P_WS))
    k.I("K1_kg_s2:")
    k.I("s_mov_b64 exec, s[12:13]")
    k.stamp_out(6, sp(P_WS))
    k.I("s_endpgm")


def role_ln1(k):
    RP = 960
    R = 4
    k.I("K1_ln1:")
    k.stamp(0)
    k.I("v_lshrrev_b32 v1, 6, v0")
    k.I("s_and_b32 s5, s2, 7")
    k.I("v_readfirstlane_b32 s4, v1")
    k.I("s_lshl_b32 s5, s5, 4")
    k.I("s_lshr_b32 s6, s2, 3")
    k.I("s_add_u32 s5, s5, s6")
    k.I("s_lshl_b32 s14, s5, 4")
    k.I("s_lshl_b32 s5, s4, 2")
    k.I("s_add_u32 s3, s14, s5")
    k.I("v_and_b32 v1, 63, v0")
    k.I("s_mul_i32 s5, s3, 896")
    k.I("v_lshlrev_b32 v2, 4, v1")
    k.I("v_add_u32 v3, s5, v2")
    X, XF = 8, 40
    for i in range(4 * R):
        k.I("v_mov_b32 v%d, 0" % (X + i))
    k.I("v_cmp_gt_u32 vcc, 56, v1")
    k.I("s_mul_i32 s6, s4, %d" % (R * RP))
    k.I("v_add_u32 v5, s6, v2")
    k.I("s_waitcnt lgkmcnt(0)")
    k.I("s_and_saveexec_b64 s[12:13], vcc")
    for r in range(R):
        k.VM("global_load_dwordx4 v[%d:%d], v3, %s offset:%d" % (X + 4 * r, X + 4 * r + 3, sp(P_U), 896 * r))
    k.I("s_mov_b64 exec, s[12:13]")
    k.I("v_bfe_u32 v6, v1, 4, 1")
    k.I("v_bfe_u32 v7, v1, 2, 2")
    k.I("v_lshl_add_u32 v104, v6, 3, v7")
    k.I("v_mul_u32_u24 v104, %d, v104" % RP)
    k.I("v_and_b32 v105, 3, v1")
    k.I("s_lshl_b32 s6, s4, 6")
    k.I("v_lshl_add_u32 v105, v105, 3, s6")
    k.I("v_lshrrev_b32 v111, 5, v1")
    k.I("v_lshl_add_u32 v105, v111, 5, v105")
    k.I("v_add_u32 v106, v104, v105")
    k.I("v_sub_u32 v104, 7, v7")
    k.I("v_lshl_add_u32 v104, v6, 3, v104")
    k.I("v_mul_u32_u24 v104, %d, v104" % RP)
    k.I("v_add_u32 v107, v104, v105")
    k.I("v_subrev_u32 v110, %d, v107" % (4 * RP))
    k.I("v_and_b32 v104, 15, v1")
    k.I("v_lshl_add_u32 v104, v111, 4, v104")
    k.I("s_lshl_b32 s6, s4, 5")
    k.I("v_add_u32 v104, s6, v104")
    k.I("v_mul_u32_u24 v108, %d, v104" % HP)
    k.I("v_lshl_add_u32 v108, v6, 4, v108")
    k.I("s_lshl_b32 s7, s14, 1")
    k.I("s_add_u32 s7, s7, %d" % XT_OFF)
    k.I("v_add_u32 v108, s7, v108")
    k.I("v_mul_u32_u24 v109, %d, v104" % UREV_PITCH)
    k.I("v_lshlrev_b32 v105, 4, v6")
    k.I("v_sub_u32 v109, v109, v105")
    k.I("s_sub_u32 s7, 2040, s14")
    k.I("s_lshl_b32 s7, s7, 1")
    k.I("v_add_u32 v109, s7, v109")
    k.I("s_waitcnt vmcnt(0)")
    k.stamp(1)
    k.I("s_and_saveexec_b64 s[12:13], vcc")
    for r in range(R):
        k.LG("ds_write_b128 v5, v[%d:%d] offset:%d" % (X + 4 * r, X + 4 * r + 3, r * RP))
    k.I("s_mov_b64 exec, s[12:13]")
    for r in range(R):
        for cp in range(4):
            s_ = X + 4 * r + cp
            d = XF + 8 * r + 2 * cp
            k.I("v_lshlrev_b32 v%d, 16, v%d" % (d, s_))
            k.I("v_and_b32 v%d, 0xffff0000, v%d" % (d + 1, s_))
    k.I("s_waitcnt lgkmcnt(0)")
    k.I("s_barrier")
    TR = 80

    def tr_store(a0, a1, off1, gaddr, gstep, lab):
        for n in range(4):
            o = TR + 4 * n
            if n == 3:
                k.I("s_cmp_ge_u32 s4, 2")
                k.I("s_cbranch_scc1 %s_a" % lab)
            k.LG("ds_read_b64_tr_b16 v[%d:%d], v%d offset:%d" % (o, o + 1, a0, 256 * n))
            k.LG("ds_read_b64_tr_b16 v[%d:%d], v%d offset:%d" % (o + 2, o + 3, a1, 256 * n + off1))
        k.I("%s_a:" % lab)
        k.I("s_waitcnt lgkmcnt(0)")
        for n in range(4):
            o = TR + 4 * n
            if n == 3:
                k.I("s_cbranch_scc1 %s_b" % lab)
            k.VM("global_store_dwordx4 v%d, v[%d:%d], %s" % (gaddr, o, o + 3, sp(P_WS)))
            if n < 3:
                k.I("v_add_u32 v%d, %d, v%d" % (gaddr, gstep, gaddr))
        k.I("%s_b:" % lab)

    k.stamp(2)
    tr_store(106, 106, 4 * RP, 108, 128 * HP, "K1_l1")
    k.stamp(3)
    MEAN, S, T = 112, 120, 24
    for r in range(R):
        b = XF + 8 * r
        k.I("v_add_f32 v%d, v%d, v%d" % (S + r, b, b + 1))
        k.I("v_add_f32 v%d, v%d, v%d" % (S + 4 + r, b + 2, b + 3))
    for c in (4, 6):
        for r in range(R):
            k.I("v_add_f32 v%d, v%d, v%d" % (S + r, S + r, XF + 8 * r + c))
            k.I("v_add_f32 v%d, v%d, v%d" % (S + 4 + r, S + 4 + r, XF + 8 * r + c + 1))
    for r in range(R):
        k.I("v_add_f32 v%d, v%d, v%d" % (S + r, S + r, S + 4 + r))
    dpp_reduce(k, "v_add_f32", [S + r for r in range(R)])
    for r in range(R):
        k.I("v_readlane_b32 s%d, v%d, 63" % (44 + r, S + r))
    k.I("v_mov_b32 v111, %s" % f32hex(1.0 / 448))
    for r in range(R):
        k.I("v_mul_f32 v%d, s%d, v111" % (MEAN + r, 44 + r))
    for r in range(2 * R):
        k.I("v_mov_b32 v%d, 0" % (S + r))
    k.I("s_and_saveexec_b64 s[12:13], vcc")
    for c in range(0, 8, 2):
        for r in range(R):
            k.I("v_sub_f32 v%d, v%d, v%d" % (T + r, XF + 8 * r + c, MEAN + r))
            k.I("v_sub_f32 v%d, v%d, v%d" % (T + 4 + r, XF + 8 * r + c + 1, MEAN + r))
        for r in range(R):
            k.I("v_fmac_f32 v%d, v%d, v%d" % (S + r, T + r, T + r))
            k.I("v_fmac_f32 v%d, v%d, v%d" % (S + 4 + r, T + 4 + r, T + 4 + r))
    k.I("s_mov_b64 exec, s[12:13]")
    for r in range(R):
        k.I("v_add_f32 v%d, v%d, v%d" % (S + r, S + r, S + 4 + r))
    dpp_reduce(k, "v_add_f32", [S + r for r in range(R)])
    for r in range(R):
        k.I("v_readlane_b32 s%d, v%d, 63" % (44 + r, S + r))
    for r in range(R):
        k.I("v_mul_f32 v%d, s%d, v111" % (S + r, 44 + r))
    for r in range(R):
        k.I("v_cvt_pk_bf16_f32 v%d, v%d, v%d" % (S + r, S + r, MEAN + r))
    for r in range(R):
        k.I("v_and_b32 v%d, 0xffff0000, v%d" % (MEAN + r, S + r))
        k.I("v_lshlrev_b32 v%d, 16, v%d" % (S + r, S + r))
    for r in range(R):
        k.I("v_add_f32 v%d, %s, v%d" % (S + r, f32hex(1e-5), S + r))
    for r in range(R):
        k.I("v_cvt_pk_bf16_f32 v%d, v%d, v%d" % (S + r, S + r, S + r))
    for r in range(R):
        k.I("v_lshlrev_b32 v%d, 16, v%d" % (S + r, S + r))
    for r in range(R):
        k.I("v_sqrt_f32 v%d, v%d" % (S + r, S + r))
    for r in range(R):
        k.I("v_cvt_pk_bf16_f32 v%d, v%d, v%d" % (S + r, S + r, S + r))
    for r in range(R):
        k.I("v_lshlrev_b32 v%d, 16, v%d" % (S + r, S + r))
    for r in range(R):
        k.I("v_rcp_f32 v%d, v%d" % (S + 4 + r, S + r))
    k.stamp(4)
    k.sched_begin()
    for r in range(R):
        b = XF + 8 * r
        T = 8 + 8 * r
        for c in range(8):
            k.I("v_sub_f32 v%d, v%d, v%d" % (b + c, b + c, MEAN + r))
        for c in range(0, 8, 2):
            k.I("v_cvt_pk_bf16_f32 v%d, v%d, v%d" % (T + c // 2, b + c, b + c + 1))
        for c in range(0, 8, 2):
            k.I("v_lshlrev_b32 v%d, 16, v%d" % (b + c, T + c // 2))
            k.I("v_and_b32 v%d, 0xffff0000, v%d" % (b + c + 1, T + c // 2))
        for c in range(8):
            k.I("v_mul_f32 v%d, v%d, v%d" % (T + c, S + 4 + r, b + c))
        for c in range(8):
            k.I("v_fma_f32 v%d, -v%d, v%d, v%d" % (b + c, T + c, S + r, b + c))
        for c in range(8):
            k.I("v_fma_f32 v%d, v%d, v%d, v%d" % (b + c, b + c, S + 4 + r, T + c))
        for c in range(0, 8, 2):
            k.I("v_cvt_pk_bf16_f32 v%d, v%d, v%d" % (T + c // 2, b + c, b + c + 1))
        for c in range(0, 8, 2):
            k.I("v_lshlrev_b32 v%d, 16, v%d" % (b + c, T + c // 2))
            k.I("v_and_b32 v%d, 0xffff0000, v%d" % (b + c + 1, T + c // 2))
        for c in range(0, 8, 2):
            k.I("v_cvt_pkrtz_f16_f32 v%d, v%d, v%d" % (T + c // 2, b + c, b + c + 1))
    k.sched_end()
    k.stamp(5)
    k.I("s_barrier")
    k.I("s_and_saveexec_b64 s[12:13], vcc")
    for r in range(R):
        T = 8 + 8 * r
        k.LG("ds_write_b128 v5, v[%d:%d] offset:%d" % (T, T + 3, r * RP))
    k.I("s_mov_b64 exec, s[12:13]")
    k.I("s_waitcnt vmcnt(0) lgkmcnt(0)")
    k.I("s_barrier")
    k.stamp(6)
    tr_store(107, 110, 0, 109, 128 * UREV_PITCH, "K1_l2")
    k.stamp_out(7, sp(P_WS), base=0x1D00000)
    k.I("s_endpgm")


def role_wp(k):
    RP = 192
    k.I("K1_wp:")
    k.stamp(0)
    k.I("s_sub_u32 s15, s2, %d" % (N_LN1 + N_KGEN))
    k.I("v_lshrrev_b32 v1, 6, v0")
    k.I("s_sub_u32 s3, s2, %d" % (N_LN1 + N_KGEN))
    k.I("v_readfirstlane_b32 s4, v1")
    k.I("v_and_b32 v1, 63, v0")
    k.I("s_lshl_b32 s3, s3, 3")
    k.I("s_lshl_b32 s5, s4, 1")
    k.I("s_add_u32 s3, s3, s5")
    k.I("s_mul_i32 s6, s4, %d" % (2 * 16 * RP))
    k.I("v_lshrrev_b32 v2, 3, v1")
    k.I("v_and_b32 v3, 7, v1")
    k.I("v_mul_u32_u24 v4, %d, v2" % RP)
    k.I("v_lshl_add_u32 v4, v3, 4, v4")
    k.I("v_add_u32 v4, s6, v4")
    k.I("v_lshrrev_b32 v5, 5, v1")
    k.I("v_bfe_u32 v6, v1, 2, 2")
    k.I("v_lshl_add_u32 v5, v5, 2, v6")
    k.I("v_mul_u32_u24 v5, %d, v5" % RP)
    k.I("v_bfe_u32 v6, v1, 4, 1")
    k.I("v_lshl_add_u32 v5, v6, 5, v5")
    k.I("v_and_b32 v6, 3, v1")
    k.I("v_lshl_add_u32 v5, v6, 3, v5")
    k.I("v_add_u32 v5, s6, v5")
    k.I("v_lshlrev_b32 v7, 4, v1")
    k.I("s_waitcnt lgkmcnt(0)")
    k.I("s_cmp_lt_u32 s3, 784")
    k.I("s_cbranch_scc0 K1_wp_w2")
    for which in range(2):
        if which == 1:
            k.I("K1_wp_w2:")
            k.I("s_sub_u32 s3, s3, 784")
        pitch, npr, nks, off, ptr = ((3584, 28, 28, W1F_OFF, P_W1), (896, 7, 112, W2F_OFF, P_W2))[which]
        magic = {28: 2341, 7: 9363}[npr]
        k.I("v_mul_u32_u24 v8, %d, v2" % pitch)
        k.I("v_lshl_add_u32 v8, v3, 4, v8")
        for t in range(2):
            k.I("s_add_u32 s7, s3, %d" % t)
            k.I("s_mul_i32 s8, s7, %d" % magic)
            k.I("s_lshr_b32 s8, s8, 16")
            k.I("s_mul_i32 s9, s8, %d" % npr)
            k.I("s_sub_u32 s9, s7, s9")
            k.I("s_mul_i32 s10, s8, %d" % (16 * pitch))
            k.I("s_lshl_b32 s11, s9, 7")
            k.I("s_add_u32 s10, s10, s11")
            k.I("v_add_u32 v9, s10, v8")
            k.I("v_add_u32 v10, %d, v9" % (8 * pitch))
            k.VM("global_load_dwordx4 v[%d:%d], v9, %s" % (16 + 8 * t, 19 + 8 * t, sp(ptr)))
            k.VM("global_load_dwordx4 v[%d:%d], v10, %s" % (20 + 8 * t, 23 + 8 * t, sp(ptr)), ("w", which, t))
            k.I("s_mul_i32 s10, s9, %d" % (2 * nks))
            k.I("s_add_u32 s10, s10, s8")
            k.I("s_lshl_b32 s10, s10, 10")
            k.I("s_add_u32 s10, s10, %d" % off)
            k.I("v_add_u32 v%d, s10, v7" % (11 + 2 * t))
            k.I("v_add_u32 v%d, %d, v%d" % (12 + 2 * t, nks * 1024, 11 + 2 * t))
        for t in range(2):
            k.wait_vm(("w", which, t))
            k.LG("ds_write_b128 v4, v[%d:%d] offset:%d" % (16 + 8 * t, 19 + 8 * t, t * 16 * RP))
            k.LG("ds_write_b128 v4, v[%d:%d] offset:%d" % (20 + 8 * t, 23 + 8 * t, t * 16 * RP + 8 * RP))
        for t in range(2):
            for tt in range(2):
                o = 32 + 8 * t + 4 * tt
                k.LG("ds_read_b64_tr_b16 v[%d:%d], v5 offset:%d" % (o, o + 1, t * 16 * RP + tt * 64))
                k.LG("ds_read_b64_tr_b16 v[%d:%d], v5 offset:%d" % (o + 2, o + 3, t * 16 * RP + tt * 64 + 8 * RP), ("r", which, t, tt))
        for t in range(2):
            for tt in range(2):
                o = 32 + 8 * t + 4 * tt
                k.wait_lg(("r", which, t, tt))
                k.VM("global_store_dwordx4 v%d, v[%d:%d], %s" % (11 + 2 * t + tt, o, o + 3, sp(P_WS)))
        k.stamp_out(1, sp(P_WS), wgreg="s15", base=0x1F80000)
        k.I("s_endpgm")


def role_cs(k):
    k.I("K1_cs:")
    k.I("s_sub_u32 s3, s2, %d" % (N_LN1 + N_KGEN + N_WP))
    k.I("s_lshl_b32 s4, s3, 7")
    k.I("v_lshrrev_b32 v1, 3, v0")
    k.I("v_and_b32 v2, 7, v0")
    k.I("v_mul_u32_u24 v3, %d, v1" % (14 * 3584))
    k.I("v_lshl_add_u32 v3, v2, 4, v3")
    k.I("v_add_u32 v3, s4, v3")
    k.I("v_lshlrev_b32 v4, 8, v1")
    k.I("v_lshl_add_u32 v4, v2, 5, v4")
    k.I("v_lshlrev_b32 v5, 2, v0")
    k.I("v_and_b32 v6, 63, v0")
    k.I("v_lshl_add_u32 v6, v6, 1, s4")
    k.I("s_waitcnt lgkmcnt(0)")
    k.VM("global_load_ushort v7, v6, %s" % sp(P_B1))
    for r in range(14):
        k.VM("global_load_dwordx4 v[%d:%d], v3, %s" % (16 + 4 * r, 19 + 4 * r, sp(P_W1)), ("c", r))
        if r < 13:
            k.I("v_add_u32 v3, 3584, v3")
    for i in range(8):
        k.I("v_mov_b32 v%d, 0" % (8 + i))
    for r in range(14):
        k.wait_vm(("c", r))
        for q in range(4):
            k.I("v_lshlrev_b32 v%d, 16, v%d" % (80 + 2 * q, 16 + 4 * r + q))
            k.I("v_and_b32 v%d, 0xffff0000, v%d" % (81 + 2 * q, 16 + 4 * r + q))
        for q in range(8):
            k.I("v_add_f32 v%d, v%d, v%d" % (8 + q, 8 + q, 80 + q))
    k.LG("ds_write_b128 v4, v[8:11]")
    k.LG("ds_write_b128 v4, v[12:15] offset:16")
    k.I("s_waitcnt lgkmcnt(0)")
    k.I("s_barrier")
    k.I("v_cmp_gt_u32 vcc, 64, v0")
    k.I("s_and_saveexec_b64 s[12:13], vcc")
    k.I("s_cbranch_execz K1_exit")
    for r in range(32):
        k.LG("ds_read_b32 v%d, v5 offset:%d" % (16 + r, 256 * r))
    k.I("s_lshl_b32 s4, s3, 8")
    k.I("s_add_u32 s4, s4, %d" % CS_OFF)
    k.I("v_add_u32 v5, s4, v5")
    k.I("s_waitcnt lgkmcnt(0)")
    for st in (16, 8, 4, 2, 1):
        for r in range(st):
            k.I("v_add_f32 v%d, v%d, v%d" % (16 + r, 16 + r, 16 + st + r))
    k.I("v_lshlrev_b32 v7, 16, v7")
    k.I("v_add_u32 v6, 8192, v5")
    k.VM("global_store_dword v5, v16, %s" % sp(P_WS))
    k.VM("global_store_dword v6, v7, %s" % sp(P_WS))
    k.I("s_endpgm")


def gen_k1():
    k = Kern("k1_prep_kernel")
    k.I("s_cmp_ge_u32 s2, %d" % K1_WGS)
    k.I("s_cbranch_scc1 K1_exit")
    k.I("s_load_dwordx16 s[16:31], s[0:1], 0")
    k.I("s_load_dwordx8 s[32:39], s[0:1], 64")
    k.I("s_load_dwordx2 s[40:41], s[0:1], 112")
    only = os.environ.get("K1_ONLY", "kgen,ln1,wp,cs").split(",")
    tgt = lambda n: ("K1_" + n) if n in only else "K1_exit"
    k.I("s_cmp_lt_u32 s2, %d" % N_LN1)
    k.I("s_cbranch_scc1 " + tgt("ln1"))
    k.I("s_cmp_lt_u32 s2, %d" % (N_KGEN + N_LN1))
    k.I("s_cbranch_scc1 " + tgt("kgen"))
    k.I("s_cmp_lt_u32 s2, %d" % (N_KGEN + N_LN1 + N_WP))
    k.I("s_cbranch_scc1 " + tgt("wp"))
    k.I("s_branch " + tgt("cs"))
    k.I("K1_exit:")
    k.I("s_endpgm")
    role_kgen(k)
    role_ln1(k)
    role_wp(k)
    role_cs(k)
    return k
```

```python
from asmlib import *
from gen_k1 import *
import os

K3_WGS = 224
K3_BLOCK = 512
ST = 57344
CST = ST + 4096
K3_LDS = CST + 2048
GK1 = -2.0 * 0.7978845608028654 * L2E
GK2 = GK1 * 0.044715


def gen_k3():
    k = Kern("k3_gemm1_kernel")
    k.I("s_cmp_ge_u32 s2, %d" % K3_WGS)
    k.I("s_cbranch_scc1 K3_exit")
    k.stamp(0)
    k.I("s_load_dwordx2 s[40:41], s[0:1], 112")
    k.I("v_lshrrev_b32 v1, 6, v0")
    k.I("v_and_b32 v2, 63, v0")
    k.I("v_readfirstlane_b32 s4, v1")
    k.I("s_and_b32 s5, s2, 7")
    k.I("s_lshr_b32 s6, s2, 3")
    k.I("s_mul_i32 s7, s6, 37")
    k.I("s_lshr_b32 s7, s7, 8")
    k.I("s_mul_i32 s8, s7, 7")
    k.I("s_sub_u32 s6, s6, s8")
    k.I("s_lshl_b32 s5, s5, 2")
    k.I("s_add_u32 s5, s5, s7")
    k.I("s_lshl_b32 s9, s6, 3")
    k.I("s_add_u32 s9, s9, s4")
    k.I("s_and_b32 s10, s4, 1")
    k.I("s_xor_b32 s11, s10, 1")
    k.I("s_lshr_b32 s18, s4, 1")
    for i in range(7):
        k.I("s_mov_b32 s%d, %d" % (48 + i, 4096 * i))
    k.I("v_lshrrev_b32 v3, 3, v2")
    k.I("v_lshrrev_b32 v4, 2, v2")
    k.I("v_lshrrev_b32 v5, 4, v2")
    k.I("v_xor_b32 v4, v4, v5")
    k.I("v_and_b32 v4, 1, v4")
    k.I("v_mul_u32_u24 v5, %d, v3" % HP)
    k.I("v_lshl_add_u32 v5, v4, 6, v5")
    k.I("v_and_b32 v4, 3, v2")
    k.I("v_lshl_add_u32 v5, v4, 4, v5")
    k.I("s_lshl_b32 s12, s5, 7")
    k.I("s_add_u32 s12, s12, %d" % HT_OFF)
    k.I("v_add_u32 v5, s12, v5")
    k.I("s_mul_i32 s12, s9, 28672")
    k.I("s_add_u32 s12, s12, %d" % W1F_OFF)
    k.I("v_lshlrev_b32 v6, 4, v2")
    k.I("v_add_u32 v6, s12, v6")
    k.I("s_lshr_b32 s12, s4, 2")
    k.I("s_lshl_b32 s12, s12, 13")
    k.I("s_lshl_b32 s13, s6, 10")
    k.I("s_add_u32 s12, s12, s13")
    k.I("s_and_b32 s13, s4, 3")
    k.I("s_lshl_b32 s13, s13, 8")
    k.I("s_add_u32 s12, s12, s13")
    k.I("s_add_u32 s12, s12, %d" % CS_OFF)
    k.I("v_lshl_add_u32 v9, v2, 2, s12")
    k.I("s_lshl_b32 s12, s4, 8")
    k.I("s_add_u32 s12, s12, %d" % CST)
    k.I("s_mov_b32 m0, s12")
    k.I("s_lshl_b32 s13, s4, 10")
    k.I("s_mul_i32 s14, s4, %d" % (8 * HP))
    k.I("s_waitcnt lgkmcnt(0)")
    k.I("s_mov_b32 s44, s40")
    k.I("s_and_b32 s45, s41, 0xffff")
    k.I("s_mov_b32 s46, %d" % WS_USED)
    k.I("s_mov_b32 s47, 0x00020000")
    AD = int(os.environ.get("K3AD", "12"))
    ACC, BR, CSR, B1R, BA, SA, AR = 16, 48, 72, 88, 96, 100, 112
    NTOP = AR + 4 * AD

    def dma(i):
        k.I("s_mov_b32 m0, s13")
        k.VM("buffer_load_dwordx4 v5, s[44:47], s14 offen lds", ("dma", i))
        k.I("s_add_u32 s13, s13, 8192")
        k.I("s_add_u32 s14, s14, %d" % (64 * HP))

    def loadA(ks):
        r = AR + 4 * (ks % AD)
        so = "s%d" % (48 + ks // 4)
        k.VM("buffer_load_dwordx4 v[%d:%d], v6, s[44:47], %s offen offset:%d" % (r, r + 3, so, 1024 * (ks % 4)), ("A", ks))

    seq = []
    for i in range(7):
        seq.append(("d", i))
        for j in range(4):
            seq.append(("a", 4 * i + j))
    PRE = int(os.environ.get("K3PRE", "8"))
    pos = [0]

    def issue_upto(ks_lim):
        while pos[0] < len(seq):
            t, i = seq[pos[0]]
            need = 4 * i if t == "d" else i
            if need >= ks_lim:
                break
            (dma if t == "d" else loadA)(i)
            pos[0] += 1

    k.VM("buffer_load_dword v9, s[44:47], 0 offen lds")
    issue_upto(PRE)
    k.I("v_lshrrev_b32 v3, 5, v2")
    k.I("v_bfe_u32 v4, v2, 2, 2")
    k.I("v_lshl_add_u32 v11, v3, 2, v4")
    k.I("v_lshlrev_b32 v11, 7, v11")
    k.I("v_bfe_u32 v12, v2, 4, 1")
    k.I("v_lshl_add_u32 v11, v12, 5, v11")
    k.I("v_and_b32 v12, 3, v2")
    k.I("v_lshl_add_u32 v11, v12, 3, v11")
    k.I("v_bfe_u32 v4, v2, 3, 1")
    for b in range(2):
        k.I("v_xor_b32 v12, s%d, v4" % (10 + b))
        k.I("v_lshl_add_u32 v%d, v12, 6, v11" % (BA + b))
    for i in range(4):
        k.I("v_mov_b32 v%d, 0" % (SA + i))
    k.I("v_lshrrev_b32 v8, 5, v2")
    k.I("s_lshl_b32 s12, s4, 7")
    k.I("s_add_u32 s12, s12, %d" % CST)
    k.I("v_lshl_add_u32 v9, v8, 4, s12")

    def readB(ks):
        r = BR + 8 * (ks % 3)
        off = ks * 2048
        for b in range(2):
            k.LG("ds_read_b64_tr_b16 v[%d:%d], v%d offset:%d" % (r + 4 * b, r + 4 * b + 1, BA + b, off))
            k.LG("ds_read_b64_tr_b16 v[%d:%d], v%d offset:%d" % (r + 4 * b + 2, r + 4 * b + 3, BA + b, off + 1024),
                 ("B", ks, b))

    cdone = False
    for ks in range(28):
        if ks % 4 == 0:
            k.wait_vm(("dma", ks // 4))
            k.I("s_barrier")
            if ks in (0, 8, 16, 24):
                k.stamp(1 + (0, 8, 16, 24).index(ks))
            readB(ks)
        if (ks + 1) % 4:
            readB(ks + 1)
        k.wait_vm(("A", ks))
        ar = AR + 4 * (ks % AD)
        br = BR + 8 * (ks % 3)
        for b in range(2):
            k.wait_lg(("B", ks, b))
            c = ACC + 16 * b
            cs = "0" if ks == 0 else "v[%d:%d]" % (c, c + 15)
            k.I("v_mfma_f32_32x32x16_bf16 v[%d:%d], v[%d:%d], v[%d:%d], %s" %
                (c, c + 15, ar, ar + 3, br + 4 * b, br + 4 * b + 3, cs))
            k.I("s_cmp_lg_u32 s18, %d" % (ks % 4))
            k.I("s_cbranch_scc1 K3_s%d_%d" % (ks, b))
            for j in range(2):
                t0 = SA + 4 + 2 * j
                k.I("v_lshlrev_b32 v%d, 16, v%d" % (t0, br + 2 * b + j))
                k.I("v_and_b32 v%d, 0xffff0000, v%d" % (t0 + 1, br + 2 * b + j))
            for j in range(2):
                t0 = SA + 4 + 2 * j
                k.I("v_add_f32 v%d, v%d, v%d" % (SA, SA, t0))
                k.I("v_fmac_f32 v%d, v%d, v%d" % (SA + 1, t0, t0))
                k.I("v_add_f32 v%d, v%d, v%d" % (SA + 2, SA + 2, t0 + 1))
                k.I("v_fmac_f32 v%d, v%d, v%d" % (SA + 3, t0 + 1, t0 + 1))
            k.I("K3_s%d_%d:" % (ks, b))
        assert PRE <= AD - 1 or AD >= 28
        issue_upto(ks + 1 + PRE)
    k.stamp(5)
    k.I("s_lshl_b32 s12, s10, 2")
    k.I("s_add_u32 s12, s12, s18")
    k.I("s_lshl_b32 s12, s12, 9")
    k.I("v_lshl_add_u32 v3, v2, 3, s12")
    k.I("v_add_u32 v3, %d, v3" % ST)
    k.I("v_add_f32 v%d, v%d, v%d" % (SA, SA, SA + 2))
    k.I("v_add_f32 v%d, v%d, v%d" % (SA + 1, SA + 1, SA + 3))
    k.LG("ds_write_b64 v3, v[%d:%d]" % (SA, SA + 1))
    k.I("v_and_b32 v4, 31, v2")
    k.I("v_lshlrev_b32 v4, 3, v4")
    for b in range(2):
        k.I("s_lshl_b32 s12, s%d, 11" % (10 + b))
        k.I("s_add_u32 s12, s12, %d" % ST)
        k.I("v_add_u32 v%d, s12, v4" % (BA + b))
    B1F = 48
    for q in range(4):
        k.LG("ds_read_b128 v[%d:%d], v9 offset:%d" % (CSR + 4 * q, CSR + 4 * q + 3, 32 * q))
        k.LG("ds_read_b128 v[%d:%d], v9 offset:%d" % (B1F + 4 * q, B1F + 4 * q + 3, 1024 + 32 * q))
    k.I("s_waitcnt lgkmcnt(0)")
    k.I("s_barrier")
    SR = AR
    for b in range(2):
        for i in range(4):
            k.LG("ds_read2_b64 v[%d:%d], v%d offset0:%d offset1:%d" %
                 (SR + 16 * b + 4 * i, SR + 16 * b + 4 * i + 3, BA + b, 64 * i, 64 * i + 32), "st")
    k.wait_lg("st")
    NR = 104
    k.sched_begin()
    for b in range(2):
        s = SR + 16 * b
        for i in range(4):
            k.I("v_add_f32 v%d, v%d, v%d" % (s + 4 * i, s + 4 * i, s + 4 * i + 2))
            k.I("v_add_f32 v%d, v%d, v%d" % (s + 4 * i + 1, s + 4 * i + 1, s + 4 * i + 3))
        for i in (0, 8):
            k.I("v_add_f32 v%d, v%d, v%d" % (s + i, s + i, s + i + 4))
            k.I("v_add_f32 v%d, v%d, v%d" % (s + i + 1, s + i + 1, s + i + 5))
        k.I("v_add_f32 v%d, v%d, v%d" % (s, s, s + 8))
        k.I("v_add_f32 v%d, v%d, v%d" % (s + 1, s + 1, s + 9))
        k.I("v_mul_f32 v%d, %s, v%d" % (s, f32hex(1.0 / 448), s))
        k.I("v_mul_f32 v%d, %s, v%d" % (s + 1, f32hex(1.0 / 448), s + 1))
        k.I("v_fma_f32 v%d, -v%d, v%d, v%d" % (s + 1, s, s, s + 1))
        k.I("v_max_f32 v%d, 0, v%d" % (s + 1, s + 1))
        k.I("v_cvt_pk_bf16_f32 v%d, v%d, -v%d" % (s + 2, s + 1, s))
        k.I("v_and_b32 v%d, 0xffff0000, v%d" % (NR + 2 * b, s + 2))
        k.I("v_lshlrev_b32 v%d, 16, v%d" % (s + 2, s + 2))
        k.I("v_add_f32 v%d, %s, v%d" % (s + 2, f32hex(1e-5), s + 2))
        k.I("v_cvt_pk_bf16_f32 v%d, v%d, v%d" % (s + 2, s + 2, s + 2))
        k.I("v_lshlrev_b32 v%d, 16, v%d" % (s + 2, s + 2))
        k.I("v_sqrt_f32 v%d, v%d" % (s + 2, s + 2))
        k.I("v_cvt_pk_bf16_f32 v%d, v%d, v%d" % (s + 2, s + 2, s + 2))
        k.I("v_lshlrev_b32 v%d, 16, v%d" % (s + 2, s + 2))
        k.I("v_rcp_f32 v%d, v%d" % (NR + 2 * b + 1, s + 2))
    k.sched_end()
    k.I("v_lshlrev_b32 v3, 4, v2")
    for b in range(2):
        k.I("s_lshl_b32 s13, s5, 1")
        k.I("s_add_u32 s12, s%d, s13" % (10 + b))
        k.I("s_mul_i32 s12, s12, 112")
        k.I("s_lshl_b32 s13, s9, 1")
        k.I("s_add_u32 s12, s12, s13")
        k.I("s_lshl_b32 s12, s12, 10")
        k.I("s_add_u32 s12, s12, %d" % HF_OFF)
        k.I("v_add_u32 v%d, s12, v3" % (BA + b))
    k.I("s_mov_b32 s16, 0x00003f80")
    k.I("s_mov_b32 s17, 0x3f800000")
    KK, ONE = 108, 110
    k.I("v_mov_b32 v%d, %s" % (KK, f32hex(GK1)))
    k.I("v_mov_b32 v%d, %s" % (KK + 1, f32hex(GK2)))
    k.I("v_mov_b32 v%d, 1.0" % ONE)
    k.I("v_mov_b32 v%d, 1.0" % (ONE + 1))
    k.stamp(6)
    TT = AR
    OUT = AR + 32
    P = lambda r: "v[%d:%d]" % (r, r + 1)
    for b in range(2):
        c = ACC + 16 * b
        nr = NR + 2 * b
        k.sched_begin()
        for j in range(2):
            o = OUT + 4 * (2 * b + j)
            T = TT + 16 * j
            for r in range(8 * j, 8 * j + 8, 2):
                x = c + r
                t = T + 2 * ((r % 8) // 2)
                t2 = T + 8 + 2 * ((r % 8) // 2)
                k.I("v_pk_fma_f32 %s, %s, %s, %s op_sel:[0,0,0] op_sel_hi:[1,0,1]" % (P(x), P(CSR + r), P(nr), P(x)))
                k.I("v_pk_mul_f32 %s, %s, %s op_sel:[0,1] op_sel_hi:[1,1]" % (P(x), P(x), P(nr)))
                k.I("v_cvt_pk_bf16_f32 v%d, v%d, v%d" % (t, x, x + 1))
                k.I("v_dot2_f32_bf16 v%d, v%d, s16, v%d" % (x, t, B1F + r))
                k.I("v_dot2_f32_bf16 v%d, v%d, s17, v%d" % (x + 1, t, B1F + r + 1))
                k.I("v_cvt_pk_bf16_f32 v%d, v%d, v%d" % (t, x, x + 1))
                k.I("v_lshlrev_b32 v%d, 16, v%d" % (x, t))
                k.I("v_and_b32 v%d, 0xffff0000, v%d" % (x + 1, t))
                k.I("v_pk_mul_f32 %s, %s, %s" % (P(t), P(x), P(x)))
                k.I("v_pk_fma_f32 %s, %s, %s, %s op_sel:[0,1,0] op_sel_hi:[1,1,0]" % (P(t), P(t), P(KK), P(KK)))
                k.I("v_pk_mul_f32 %s, %s, %s" % (P(t), P(t), P(x)))
                k.I("v_exp_f32 v%d, v%d" % (t2, t))
                k.I("v_exp_f32 v%d, v%d" % (t2 + 1, t + 1))
                k.I("v_pk_add_f32 %s, %s, %s" % (P(t2), P(t2), P(ONE)))
                k.I("v_rcp_f32 v%d, v%d" % (t, t2))
                k.I("v_rcp_f32 v%d, v%d" % (t + 1, t2 + 1))
                k.I("v_pk_mul_f32 %s, %s, %s" % (P(x), P(x), P(t)))
                k.I("v_cvt_pk_bf16_f32 v%d, v%d, v%d" % (o + (r % 8) // 2, x, x + 1))
        k.sched_end()
        for j in range(2):
            o = OUT + 4 * (2 * b + j)
            k.VM("global_store_dwordx4 v%d, v[%d:%d], s[40:41] offset:%d" % (BA + b, o, o + 3, 1024 * j))
    k.stamp_out(7, "s[40:41]", base=0x1E00000)
    k.I("K3_exit:")
    k.I("s_endpgm")
    return k
```

```python
from asmlib import *
from gen_k1 import *

K4_WGS = 224
QS, TS = 1056, 4416
WS_ = 4 * TS
HB = 4 * WS_
K4_LDS = 82048


def gen_k4():
    k = Kern("k4_gemm2_kernel")
    k.I("s_cmp_ge_u32 s2, %d" % K4_WGS)
    k.I("s_cbranch_scc1 K4_exit")
    k.stamp(0)
    k.I("s_load_dwordx2 s[40:41], s[0:1], 112")
    k.I("s_load_dwordx4 s[36:39], s[0:1], 88")
    k.I("v_lshrrev_b32 v1, 6, v0")
    k.I("v_and_b32 v2, 63, v0")
    k.I("v_readfirstlane_b32 s4, v1")
    k.I("s_and_b32 s5, s2, 7")
    k.I("s_lshr_b32 s6, s2, 3")
    k.I("s_mul_i32 s7, s6, 37")
    k.I("s_lshr_b32 s7, s7, 8")
    k.I("s_lshl_b32 s5, s5, 2")
    k.I("s_add_u32 s5, s5, s7")
    k.I("s_mul_i32 s7, s7, 7")
    k.I("s_sub_u32 s6, s6, s7")
    import os
    if os.environ.get("K4SAME") == "1":
        k.I("s_mov_b32 s5, 0")
        k.I("s_mov_b32 s6, 0")
    if os.environ.get("K4SAME") == "2":
        k.I("s_mov_b32 s5, 0")
    if os.environ.get("K4SAME") == "3":
        k.I("s_mov_b32 s6, 0")
    for i in range(7):
        k.I("s_mov_b32 s%d, %d" % (48 + i, 4096 * i))
    k.I("s_mul_i32 s8, s6, 224")
    k.I("s_mul_i32 s9, s4, 28")
    k.I("s_add_u32 s8, s8, s9")
    k.I("s_lshl_b32 s8, s8, 10")
    k.I("s_add_u32 s8, s8, %d" % W2F_OFF)
    k.I("s_mul_i32 s10, s5, 224")
    k.I("s_add_u32 s10, s10, s9")
    k.I("s_lshl_b32 s10, s10, 10")
    k.I("s_add_u32 s10, s10, %d" % HF_OFF)
    k.I("v_lshlrev_b32 v3, 4, v2")
    k.I("v_add_u32 v4, s8, v3")
    k.I("v_add_u32 v5, %d, v4" % (112 * 1024))
    k.I("v_add_u32 v6, s10, v3")
    k.I("v_add_u32 v7, %d, v6" % (112 * 1024))
    k.I("s_waitcnt lgkmcnt(0)")
    k.I("s_mov_b32 s44, s40")
    k.I("s_and_b32 s45, s41, 0xffff")
    k.I("s_mov_b32 s46, %d" % WS_USED)
    k.I("s_mov_b32 s47, 0x00020000")
    ACC, RING, HR, B2R = 16, 80, 208, 224
    DEPTH = 8

    def load(ks):
        r = RING + 16 * (ks % DEPTH)
        so = "s%d" % (48 + ks // 4)
        for i, va in enumerate((4, 5, 6, 7)):
            k.VM("buffer_load_dwordx4 v[%d:%d], v%d, s[44:47], %s offen offset:%d" %
                 (r + 4 * i, r + 4 * i + 3, va, so, 1024 * (ks % 4)), ("L", ks) if i == 3 else None)

    for ks in range(DEPTH):
        load(ks)
    k.I("s_lshl_b32 s11, s6, 6")
    k.I("s_lshl_b32 s12, s5, 6")
    k.I("v_and_b32 v8, 7, v0")
    k.I("v_lshl_add_u32 v9, v8, 3, s11")
    k.I("v_lshrrev_b32 v10, 3, v0")
    k.I("v_add_u32 v10, s12, v10")
    k.I("v_lshrrev_b32 v11, 3, v2")
    k.I("s_lshl_b32 s13, s4, 4")
    k.I("s_add_u32 s13, s13, s11")
    k.I("v_add_u32 v11, s13, v11")
    k.I("v_mul_u32_u24 v11, %d, v11" % HP)
    k.I("v_lshl_add_u32 v11, v8, 4, v11")
    k.I("s_lshl_b32 s13, s12, 1")
    k.I("s_add_u32 s13, s13, %d" % HT_OFF)
    k.I("v_add_u32 v11, s13, v11")
    k.I("s_mul_i32 s15, s4, 2080")
    k.I("s_add_u32 s15, s15, %d" % HB)
    k.I("s_mov_b32 s16, %d" % (8 * HP))
    k.I("v_mul_u32_u24 v244, 1040, v8")
    k.I("v_lshrrev_b32 v15, 3, v0")
    k.I("v_lshl_add_u32 v244, v15, 1, v244")
    k.I("v_add_u32 v244, %d, v244" % HB)
    k.I("v_lshlrev_b32 v12, 1, v9")
    k.I("v_mul_u32_u24 v13, 896, v10")
    k.I("v_lshl_add_u32 v13, v9, 1, v13")
    k.I("v_add_u32 v240, %d, v13" % (32 * 896))

    def eploads():
        k.I("s_mov_b32 m0, s15")
        k.VM("buffer_load_dwordx4 v11, s[44:47], 0 offen lds")
        k.I("s_add_u32 s15, s15, 1040")
        k.I("s_mov_b32 m0, s15")
        k.VM("buffer_load_dwordx4 v11, s[44:47], s16 offen lds")
        k.VM("global_load_dwordx4 v[%d:%d], v12, s[36:37]" % (B2R, B2R + 3), "ep")
        k.VM("global_load_dword v242, v13, s[38:39]")
        k.VM("global_load_dword v243, v240, s[38:39]")
    EPK = int(os.environ.get("K4EPK", "19"))
    k.I("v_lshrrev_b32 v14, 2, v8")
    k.I("v_mul_u32_u24 v14, %d, v14" % (2 * TS))
    k.I("v_and_b32 v15, 3, v8")
    k.I("v_mul_u32_u24 v15, %d, v15" % QS)
    k.I("v_lshrrev_b32 v241, 3, v0")
    k.I("v_lshlrev_b32 v241, 4, v241")
    k.I("v_add3_u32 v241, v241, v14, v15")
    for ks in range(28):
        k.wait_vm(("L", ks))
        if ks % 7 == 0:
            k.stamp(1 + ks // 7)
        r = RING + 16 * (ks % DEPTH)
        for a in range(2):
            for b in range(2):
                c = ACC + 16 * (2 * a + b)
                cs = "0" if ks == 0 else "v[%d:%d]" % (c, c + 15)
                k.I("v_mfma_f32_32x32x16_bf16 v[%d:%d], v[%d:%d], v[%d:%d], %s" %
                    (c, c + 15, r + 4 * a, r + 4 * a + 3, r + 8 + 4 * b, r + 8 + 4 * b + 3, cs))
        if ks + DEPTH < 28:
            load(ks + DEPTH)
        if ks == EPK:
            eploads()
    k.stamp(5)
    k.I("s_mul_i32 s14, s4, %d" % WS_)
    k.I("v_add_u32 v14, s14, v3")
    for t in range(4):
        for q in range(4):
            a = ACC + 16 * t + 4 * q
            k.LG("ds_write_b128 v14, v[%d:%d] offset:%d" % (a, a + 3, t * TS + q * QS))
    k.wait_vm("ep")
    k.I("s_waitcnt lgkmcnt(0)")
    k.I("s_barrier")
    for i in range(8):
        k.LG("ds_read_u16 v%d, v244 offset:%d" % (HR + i, 128 * i))
        k.LG("ds_read_u16 v%d, v244 offset:%d" % (HR + 8 + i, 128 * i + 64), "hr")
    R = 80
    for b in range(2):
        for w in range(4):
            for hh in range(2):
                r = R + 32 * b + 8 * w + 4 * hh
                k.LG("ds_read_b128 v[%d:%d], v241 offset:%d" % (r, r + 3, w * WS_ + b * TS + hh * 512), ("r", b))
    for i in range(4):
        k.I("v_lshlrev_b32 v%d, 16, v%d" % (16 + 2 * i, B2R + i))
        k.I("v_and_b32 v%d, 0xffff0000, v%d" % (17 + 2 * i, B2R + i))
    k.wait_lg("hr")
    for i in range(16):
        k.I("v_lshlrev_b32 v%d, 16, v%d" % (HR + i, HR + i))
    k.stamp(6)
    for b in range(2):
        r = R + 32 * b
        k.wait_lg(("r", b))
        k.sched_begin()
        for i in range(8):
            k.I("v_add_f32 v%d, v%d, v%d" % (r + i, r + i, r + 8 + i))
            k.I("v_add_f32 v%d, v%d, v%d" % (r + 16 + i, r + 16 + i, r + 24 + i))
        for i in range(8):
            k.I("v_add_f32 v%d, v%d, v%d" % (r + i, r + i, r + 16 + i))
        for p in range(4):
            x, y = r + 2 * p, r + 2 * p + 1
            t0 = r + 8 + p
            k.I("v_cvt_pk_bf16_f32 v%d, v%d, v%d" % (t0, x, y))
            k.I("v_lshlrev_b32 v%d, 16, v%d" % (x, t0))
            k.I("v_and_b32 v%d, 0xffff0000, v%d" % (y, t0))
            k.I("v_add_f32 v%d, v%d, v%d" % (x, x, 16 + 2 * p))
            k.I("v_add_f32 v%d, v%d, v%d" % (y, y, 17 + 2 * p))
            k.I("v_cvt_pk_bf16_f32 v%d, v%d, v%d" % (t0, x, y))
            k.I("v_lshlrev_b32 v%d, 16, v%d" % (x, t0))
            k.I("v_and_b32 v%d, 0xffff0000, v%d" % (y, t0))
            k.I("v_add_f32 v%d, v%d, v%d" % (x, x, HR + 8 * b + 2 * p))
            k.I("v_add_f32 v%d, v%d, v%d" % (y, y, HR + 8 * b + 2 * p + 1))
            k.I("v_cvt_pk_bf16_f32 v%d, v%d, v%d" % (r + 16 + p, x, y))
        k.sched_end()
        k.VM("global_store_dwordx4 v%d, v[%d:%d], s[38:39]" % (13 if b == 0 else 240, r + 16, r + 19))
    k.stamp_out(7, "s[40:41]", base=0x1E80000)
    k.I("K4_exit:")
    k.I("s_endpgm")
    return k
```
